```python
import torch

def _softmax(x, axis=-1):
    return torch.softmax(x, dim=axis)
def _gelu(x):
    return torch.nn.functional.gelu(x, approximate="tanh")
def _silu(x):
    return torch.nn.functional.silu(x)
def _sigmoid(x):
    return torch.sigmoid(x)
def _layernorm(x, axis=-1, eps=1e-5):
    m = x.mean(dim=axis, keepdim=True)
    v = x.var(dim=axis, keepdim=True, unbiased=False)
    return (x - m) / torch.sqrt(v + eps)
def _scatter_add(tgt, idx, src, axis=0):
    return tgt.clone().index_add_(axis, idx, src)
def _segment_sum(src, seg, n):
    out = torch.zeros((n,) + src.shape[1:], dtype=src.dtype)
    return out.index_add_(0, seg, src)
def _pad(x, pw):
    flat = tuple(v for pair in reversed(pw) for v in pair)
    return torch.nn.functional.pad(x, flat)

kernel_name = 'standalone__sliding_block_cached__sampling'

def setup_inputs():

    _w = (lambda a: (lambda t: t.to(torch.bfloat16) if t.is_floating_point() else t)(torch.as_tensor(a)))
    B, Sq, D = 8, 16, 576
    Hq, Hkv, Sk, Dh = 32, 16, 8192, 128
    assert Hq % Hkv == 0, (Hq, Hkv)
    return {
        "x": _w((lambda *s: torch.randn(*s, dtype=torch.bfloat16) * 0.8)(B, Sq, D)),
        "k_cache": _w((lambda *s: torch.randn(*s, dtype=torch.bfloat16) * 0.8)(B, Hkv, Sk, Dh)),
        "v_cache": _w((lambda *s: torch.randn(*s, dtype=torch.bfloat16) * 0.05)(B, Hkv, Sk, Dh)),
        "wq": _w((lambda *s: torch.randn(*s, dtype=torch.bfloat16) * 0.8)(D, Hq * Dh) * (D ** -0.5)),
        "wo": _w((lambda *s: torch.randn(*s, dtype=torch.bfloat16) * 0.05)(Hq * Dh, D) * ((Hq * Dh) ** -0.5)),
    }

def reference(x, k_cache, v_cache, wq, wo):
    B, Sq, D = x.shape
    Hq, Dh = 32, 128
    Hkv, Sk = k_cache.shape[1], k_cache.shape[2]
    W = min(4096, max(256, Sk // 4))
    rep = Hq // Hkv
    q = (lambda x, *d: x.permute(*d))((x @ wq).reshape(B, Sq, Hq, Dh), 0, 2, 1, 3)
    k = (lambda x, n, axis: torch.repeat_interleave(x, n, dim=axis))(k_cache[:, :, Sk - W:, :], rep, axis=1)
    v = (lambda x, n, axis: torch.repeat_interleave(x, n, dim=axis))(v_cache[:, :, Sk - W:, :], rep, axis=1)
    scores = torch.einsum("bhqd,bhkd->bhqk", q, k) * (Dh ** -0.5)
    p = _softmax(scores, axis=-1)
    o = torch.einsum("bhqk,bhkd->bhqd", p, v)
    return (lambda x, *d: x.permute(*d))(o, 0, 2, 1, 3).reshape(B, Sq, Hq * Dh) @ wo
```

```python
import sys, math, struct
KN = "standalone__sliding_block_cached__sampling_kernel"

HEADER = """; Kernarg layout for this problem (64 bytes, ptrs only, base s[0:1]):
"""

SLOT = 16384
NSLOT = 9
PBUF = NSLOT*SLOT
MISC = PBUF + 8192
LDS_BYTES = 163840
WS_Q = 0
WS_XCC = 0x100000
WS_AREA = 0x200000
AREA = 20480
A_O = 0
A_Y = 8192
A_ML = 8192+9216
A_END = A_ML + 256
WS_SIZE = 0x800000
STAMP_OFF = 512 << 20

class G:
    def __init__(s):
        s.L = []; s.q = {"P": [], "N": []}; s.paths = ["P", "N"]; s.nlab = 0
    def __call__(s, line): s.L.append("    " + line)
    def lab(s, name): s.L.append(name + ":")
    def c(s, t): s.L.append("    ; " + t)
    def new(s, base):
        s.nlab += 1; return f"L_{base}_{s.nlab}"
    def vm(s, line, tag):
        s(line)
        for p in s.paths: s.q[p].append(tag)
    def wait_vm(s, *tags):
        n = None
        for p in s.paths:
            q = s.q[p]
            idx = max([i for i, t in enumerate(q) if t in tags], default=None)
            if idx is None: continue
            k = len(q)-1-idx
            n = k if n is None else min(n, k)
        if n is None: return
        assert n <= 63
        s(f"s_waitcnt vmcnt({n})")
        for p in s.paths: s.q[p] = s.q[p][len(s.q[p])-n:] if n < len(s.q[p]) else s.q[p]
        if n == 0:
            for p in s.paths: s.q[p] = []
    def drain(s):
        s("s_waitcnt vmcnt(0)")
        for p in s.paths: s.q[p] = []

def f32(x): return struct.unpack("<I", struct.pack("<f", x))[0]

def gen(LA=5, prof=False, a_flag=3, kvpol="nt", wpol="nt", outpol="", spin=65536, qk_per_step=2, early=(8,)):
    g = G(); A = g
    sW = "s3"
    sK, sV, sWS, sA, sB, sDBG = "s[4:7]", "s[8:11]", "s[12:15]", "s[16:19]", "s[20:23]", "s[24:27]"
    sJ, sR, sBb, sHKV, sCB, sKEY = "s28", "s29", "s30", "s31", "s48", "s49"
    sW4K, sOFF, sT0, sT1, sT2, sT3 = "s50", "s51", "s52", "s53", "s54", "s55"
    sC, sAREA, sSAME, sCNT, sQS1, sQS2 = "s56", "s57", "s58", "s59", "s60", "s61"
    sPART, sQOFF = "s62", "s63"
    ST0 = 64
    nstamp = [0]
    def stamp(name):
        if not prof: return
        i = nstamp[0]; nstamp[0] += 1
        assert ST0+2*i+1 <= 101
        A(f"s_memrealtime s[{ST0+2*i}:{ST0+2*i+1}]"); A("s_waitcnt lgkmcnt(0)")
    vLANE = "v0"
    vK = ["v1", "v2", "v3", "v4"]; vV = "v5"; vKR = "v6"; vVR = "v7"; vL16 = "v8"
    vMX, vMC, vL0, vL1, vSC, vFL, vEXP, vZ = "v9", "v10", "v11", "v12", "v13", "v14", "v15", "v16"
    vT = [f"v{i}" for i in range(17, 40)]
    vWO, vWOX, vWR, vWRX, vML = "v40", "v41", "v42", "v43", (44, 45)
    FR = 48
    OACC = 80
    QR = 96
    SR = 128
    def vr(a, n): return f"v[{a}:{a+n-1}]"
    def ar(a, n): return f"a[{a}:{a+n-1}]"

    g.L.append(HEADER + f"; @launch grid=(256,1,1) block=(256,1,1) lds={LDS_BYTES}")
    g.L.append('.amdgcn_target "amdgcn-amd-amdhsa--gfx950"')
    g.L.append(".text"); g.L.append(f".globl {KN}"); g.L.append(".p2align 8"); g.L.append(f".type {KN},@function"); g.lab(KN)
    A("s_cmp_ge_u32 s2, 256"); A("s_cbranch_scc1 L_end")
    A("s_load_dwordx16 s[32:47], s[0:1], 0")
    if prof: A(f"s_memrealtime s[{ST0}:{ST0+1}]"); nstamp[0] = 1
    A("v_lshrrev_b32 v1, 6, v0")
    A(f"s_and_b32 {sJ}, s2, 7"); A(f"s_lshr_b32 {sR}, s2, 3")
    A(f"v_readfirstlane_b32 {sW}, v1")
    A("v_and_b32 v0, 63, v0")
    A(f"s_lshr_b32 {sBb}, {sR}, 2"); A(f"s_and_b32 {sCB}, {sR}, 3")
    A(f"s_and_b32 {sT0}, {sR}, 1"); A(f"s_lshl_b32 {sHKV}, {sJ}, 1"); A(f"s_or_b32 {sHKV}, {sHKV}, {sT0}")
    A(f"s_lshl_b32 {sKEY}, {sJ}, 5"); A(f"s_or_b32 {sKEY}, {sKEY}, {sR}")
    A(f"s_lshl_b32 {sW4K}, {sW}, 12")
    A(f"s_lshl_b32 {sT0}, {sBb}, 4"); A(f"s_or_b32 {sT0}, {sT0}, {sHKV}")
    A(f"s_lshl_b32 {sQOFF}, {sT0}, 13")
    A(f"s_lshl_b32 {sT0}, {sT0}, 21")
    A(f"s_lshr_b32 {sT1}, {sR}, 1"); A(f"s_and_b32 {sT1}, {sT1}, 1"); A(f"s_lshl_b32 {sT1}, {sT1}, 18")
    A(f"s_add_u32 {sT0}, {sT0}, {sT1}"); A(f"s_add_u32 {sT0}, {sT0}, {6144*256}"); A(f"s_add_u32 {sT0}, {sT0}, {sW4K}")
    A(f"s_mul_i32 {sAREA}, {sKEY}, {AREA}"); A(f"s_add_u32 {sAREA}, {sAREA}, {WS_AREA}")
    t0, t1, t2, t3 = vT[0], vT[1], vT[2], vT[3]
    A(f"v_lshrrev_b32 {t0}, 4, v0")
    A(f"v_and_b32 {t1}, 15, v0")
    A(f"v_lshlrev_b32 {t2}, 8, {t0}")
    for i in range(4):
        A(f"v_add_u32 {t3}, {4*i}, {t0}"); A(f"v_xor_b32 {t3}, {t3}, {t1}"); A(f"v_lshl_add_u32 {vK[i]}, {t3}, 4, {t2}")
    A(f"v_lshlrev_b32 {t3}, 2, {t0}"); A(f"v_xor_b32 {t3}, {t3}, {t1}"); A(f"v_lshl_add_u32 {vV}, {t3}, 4, {t2}")
    A(f"v_lshlrev_b32 {vL16}, 4, v0"); A(f"v_mov_b32 {vZ}, 0")
    A("s_waitcnt lgkmcnt(0)")
    A(f"s_add_u32 s4, s34, {sT0}"); A("s_addc_u32 s5, s35, 0"); A(f"s_sub_u32 s6, 262144, {sW4K}"); A("s_mov_b32 s7, 0x20000")
    A(f"s_add_u32 s8, s36, {sT0}"); A("s_addc_u32 s9, s37, 0"); A("s_mov_b32 s10, s6"); A("s_mov_b32 s11, 0x20000")
    A("s_mov_b32 s12, s46"); A("s_mov_b32 s13, s47"); A(f"s_mov_b32 s14, {WS_SIZE}"); A("s_mov_b32 s15, 0x20000")
    A("s_mov_b32 s24, s44"); A("s_mov_b32 s25, s45"); A("s_mov_b32 s26, 256"); A("s_mov_b32 s27, 0x20000")

    ring = []
    for n in range(32):
        for k, t in enumerate(early):
            if n == 16 + t: ring.append(("WO", k))
        ring.append(("T", n))
    ring += [("WO", t) for t in range(len(early), 9)]
    rpos = {e: i for i, e in enumerate(ring)}
    def slot_of(e): return rpos[e] % NSLOT
    def issue_kv(n):
        sl = slot_of(("T", n))*SLOT
        A(f"s_add_u32 m0, {sW4K}, {sl}")
        A(f"s_mov_b32 {sOFF}, {(n % 16)*SLOT}")
        for i in range(4):
            if n < 16: g.vm(f"buffer_load_dwordx4 {vK[i]}, {sK}, {sOFF} offen offset:{1024*i} {kvpol} lds", ("T", n))
            else:      g.vm(f"buffer_load_dwordx4 {vV}, {sV}, {sOFF} offen offset:{1024*i} {kvpol} lds", ("T", n))
    def csel(dst, a, b):
        A(f"s_mov_b32 {dst}, {b}"); A(f"s_cselect_b32 {dst}, {a}, {dst}")
    def clears():
        for r in range(FR, FR+4): A(f"v_mov_b32 v{r}, -1")
        A(f"s_lshl_b32 {sT1}, {sW}, 10"); A(f"v_add_u32 {vT[3]}, {sT1}, {vL16}")
        for rnd in range(4):
            A(f"s_add_u32 {sT2}, {sAREA}, {4096*rnd}")
            g.vm(f"buffer_store_dwordx4 {vr(FR,4)}, {vT[3]}, {sWS}, {sT2} offen sc1", "CLR")
        A(f"v_min_u32 {vT[2]}, {A_END-16384-16}, {vT[3]}")
        A(f"s_add_u32 {sT2}, {sAREA}, {16384}")
        g.vm(f"buffer_store_dwordx4 {vr(FR,4)}, {vT[2]}, {sWS}, {sT2} offen sc1", "CLR")
        A(f"s_getreg_b32 {sT1}, hwreg(HW_REG_XCC_ID)"); A(f"s_and_b32 {sSAME}, {sT1}, 15")
        A(f"s_lshl_b32 {sT2}, {sKEY}, 2"); A(f"s_add_u32 {sT2}, {sT2}, {WS_XCC}")
        A(f"v_mov_b32 {vT[1]}, {sSAME}")
        g.vm(f"buffer_store_dword {vT[1]}, {vZ}, {sWS}, {sT2} offen sc1", "CLR")
    def set_flag(off):
        l = g.new("nf")
        A(f"s_cmp_lg_u32 {sW}, 0"); A(f"s_cbranch_scc1 {l}")
        A(f"s_lshr_b32 {sT0}, s2, 5"); A(f"s_and_b32 {sT1}, {sT0}, 3"); A(f"s_lshl_b32 {sT1}, {sT1}, 6")
        A(f"s_lshr_b32 {sT0}, {sT0}, 2"); A(f"s_lshl_b32 {sT0}, {sT0}, 2"); A(f"s_add_u32 {sT0}, {sT0}, {sT1}")
        A(f"s_and_b32 {sT1}, s2, 31"); A(f"s_lshl_b32 {sT1}, 1, {sT1}")
        A(f"v_mov_b32 {vT[0]}, {sT1}")
        A("s_mov_b64 exec, 1")
        A(f"buffer_atomic_or {vT[0]}, {vZ}, {sDBG}, {sT0} offen offset:{off} sc1")
        A("s_mov_b64 exec, -1")
        g.lab(l)

    A(f"s_and_b32 {sT0}, {sJ}, 1"); A(f"s_cmp_eq_u32 {sT0}, 0"); A("s_cbranch_scc1 L_prod")
    g.paths = ["N"]
    for n in range(LA): issue_kv(n)
    A("s_branch L_common")
    g.lab("L_prod"); g.paths = ["P"]
    sCQ, sRG = sT3, sPART
    vQA, vQB, vD0, vD1, vQST = vT[5], vT[6], vT[7], vT[8], vT[9]
    A(f"s_lshr_b32 {sT0}, {sJ}, 1"); A(f"s_lshl_b32 {sT0}, {sT0}, 4"); A(f"s_and_b32 {sT1}, {sR}, 15"); A(f"s_or_b32 {sCQ}, {sT0}, {sT1}")
    A(f"s_lshr_b32 {sRG}, {sR}, 4")
    A(f"s_and_b32 {sT0}, {sW}, 1")
    A(f"s_mul_i32 {sT1}, {sT0}, {32*8192}"); A(f"s_lshl_b32 {sT2}, {sCQ}, 7"); A(f"s_add_u32 {sT1}, {sT1}, {sT2}")
    A(f"s_lshl_b32 {sT2}, {sRG}, 1"); A(f"s_add_u32 {sT2}, {sT2}, {sT0}"); A(f"s_mul_i32 {sT2}, {sT2}, {32*1152}")
    A(f"s_cmp_lt_u32 {sW}, 2")
    A(f"s_cselect_b32 {sT1}, {sT1}, {sT2}")
    A("s_cselect_b32 s16, s38, s32"); A("s_cselect_b32 s17, s39, s33")
    csel("s18", 576*8192, 128*1152)
    csel(sQS1, 8*8192, 8*1152)
    csel(sQS2, 64*8192 - 4*8*8192, (128 - 4*8*1152) & 0xffffffff)
    csel(sT2, 8192, 1152)
    A(f"s_sub_u32 s18, s18, {sT1}")
    A(f"s_add_u32 s16, s16, {sT1}"); A("s_addc_u32 s17, s17, 0"); A("s_mov_b32 s19, 0x20000")
    A(f"v_lshrrev_b32 {t0}, 3, v0")
    A(f"v_and_b32 {t1}, 7, v0")
    A(f"v_mul_lo_u32 {t2}, {t0}, {sT2}")
    A(f"v_lshrrev_b32 {t0}, 1, {t0}")
    A(f"v_and_b32 {t3}, 1, {t0}"); A(f"v_lshlrev_b32 {t3}, 2, {t3}")
    A(f"s_cmp_lt_u32 {sW}, 2"); A("s_cselect_b64 vcc, -1, 0")
    A(f"v_add_u32 {vD1}, 4, {t0}")
    A(f"v_cndmask_b32 {vD0}, {t0}, {t3}, vcc"); A(f"v_cndmask_b32 {vD1}, {vD1}, {t3}, vcc")
    A(f"v_xor_b32 {vD0}, {vD0}, {t1}"); A(f"v_xor_b32 {vD1}, {vD1}, {t1}")
    A(f"v_lshl_add_u32 {vD0}, {vD0}, 4, {t2}"); A(f"v_lshl_add_u32 {vD1}, {vD1}, 4, {t2}")
    A(f"s_lshl_b32 {sT0}, {sRG}, 2"); A(f"s_and_b32 {sT1}, {sW}, 2"); A(f"s_add_u32 {sT0}, {sT0}, {sT1}")
    A(f"s_lshl_b32 {sT0}, {sT0}, 4"); A(f"s_lshr_b32 {sT1}, {sCQ}, 2"); A(f"s_add_u32 {sT0}, {sT0}, {sT1}"); A(f"s_lshl_b32 {sT0}, {sT0}, 13")
    A(f"s_and_b32 {sT1}, {sCQ}, 1"); A(f"s_lshl_b32 {sT1}, {sT1}, 12"); A(f"s_add_u32 {sT0}, {sT0}, {sT1}")
    A(f"s_and_b32 {sT1}, {sW}, 1"); A(f"s_lshl_b32 {sT1}, {sT1}, 11"); A(f"s_add_u32 {sT0}, {sT0}, {sT1}")
    A(f"s_and_b32 {sT1}, {sCQ}, 2"); A(f"s_lshl_b32 {sT1}, {sT1}, 7"); A(f"s_add_u32 {sT0}, {sT0}, {sT1}")
    A(f"v_bfe_u32 {t0}, v0, 4, 1"); A(f"v_lshlrev_b32 {t0}, 17, {t0}")
    A(f"v_lshrrev_b32 {t1}, 5, v0"); A(f"v_lshl_add_u32 {t0}, {t1}, 9, {t0}")
    A(f"v_and_b32 {t1}, 15, v0"); A(f"v_lshl_add_u32 {t0}, {t1}, 4, {t0}")
    A(f"v_add_u32 {vQST}, {sT0}, {t0}")
    for r in range(FR, FR+4): A(f"v_mov_b32 v{r}, -1")
    for u in range(2):
        g.vm(f"buffer_store_dwordx4 {vr(FR,4)}, {vQST}, {sWS}, 0 offen offset:{1024*u} sc1", "CLRQ")
    qoff_state = [0]
    def issue_qp(p):
        for i in range(4):
            A(f"s_add_u32 m0, {sW4K}, {p*SLOT + 1024*i}")
            if p == 0 and i == 0: A(f"s_mov_b32 {sCNT}, 0")
            elif i == 0: A(f"s_add_u32 {sCNT}, {sCNT}, {sQS2}"); A(f"s_add_u32 {sCNT}, {sCNT}, {sQS1}")
            else: A(f"s_add_u32 {sCNT}, {sCNT}, {sQS1}")
            g.vm(f"buffer_load_dwordx4 {vD0 if i % 2 == 0 else vD1}, {sA}, {sCNT} offen {wpol} lds", ("QP", p))
    for p in range(LA): issue_qp(p)
    A(f"v_lshrrev_b32 {t0}, 4, v0")
    A(f"v_and_b32 {t1}, 3, v0")
    A(f"v_bfe_u32 {t2}, v0, 2, 2")
    A(f"v_and_b32 {t3}, 1, {t0}"); A(f"v_lshlrev_b32 {t3}, 1, {t3}")
    A(f"v_and_b32 {vQA}, 1, {t1}"); A(f"v_add_u32 {t3}, {t3}, {vQA}")
    A(f"s_and_b32 {sT0}, {sW}, 1"); A(f"s_lshl_b32 {sT0}, {sT0}, 2"); A(f"v_add_u32 {t3}, {sT0}, {t3}")
    A(f"v_lshrrev_b32 {vQA}, 1, {t2}"); A(f"v_lshlrev_b32 {vQA}, 2, {vQA}"); A(f"v_xor_b32 {t3}, {t3}, {vQA}")
    A(f"v_lshlrev_b32 {t3}, 4, {t3}")
    A(f"v_lshrrev_b32 {t1}, 1, {t1}"); A(f"v_lshl_add_u32 {t3}, {t1}, 3, {t3}")
    A(f"v_lshrrev_b32 {t0}, 1, {t0}"); A(f"v_lshl_add_u32 {t2}, {t0}, 3, {t2}")
    A(f"v_lshl_add_u32 {vQA}, {t2}, 7, {t3}")
    A(f"v_and_b32 {t0}, 31, v0"); A(f"v_bfe_u32 {t1}, v0, 1, 3"); A(f"v_lshrrev_b32 {t2}, 5, v0"); A(f"v_xor_b32 {t1}, {t1}, {t2}")
    A(f"v_lshlrev_b32 {t1}, 4, {t1}"); A(f"v_lshl_add_u32 {t1}, {t0}, 7, {t1}")
    A(f"s_lshr_b32 {sT0}, {sW}, 1"); A(f"s_lshl_b32 {sT0}, {sT0}, 12"); A(f"s_add_u32 {sT0}, {sT0}, 8192")
    A(f"v_add_u32 {vQB}, {sT0}, {t1}")
    for p in range(9):
        g.c(f"---- Qproj step {p}")
        g.wait_vm(("QP", p)); A("s_barrier")
        if p == 0: set_flag(0)
        nx = p + LA
        if nx < 9: issue_qp(nx)
        else: issue_kv(nx - 9)
        A(f"v_add_u32 {t0}, {p*SLOT}, {vQA}"); A(f"v_add_u32 {t1}, {p*SLOT}, {vQB}")
        for u in range(4):
            A(f"ds_read_b64_tr_b16 {vr(FR+8*u, 2)}, {t0} offset:{2048*u}")
            A(f"ds_read_b64_tr_b16 {vr(FR+8*u+2, 2)}, {t0} offset:{2048*u+512}")
            if u == 0: A(f"ds_read_b128 {vr(FR+8*u+4, 4)}, {t1}")
            else:
                A(f"v_xor_b32 {t2}, {32*u}, {t1}"); A(f"ds_read_b128 {vr(FR+8*u+4, 4)}, {t2}")
        for u in range(4):
            A(f"s_waitcnt lgkmcnt({3*(3-u)})")
            cc = "0" if (p == 0 and u == 0) else vr(OACC, 16)
            A(f"v_mfma_f32_32x32x16_bf16 {vr(OACC,16)}, {vr(FR+8*u,4)}, {vr(FR+8*u+4,4)}, {cc}")
    A("s_nop 11")
    for i in range(8):
        A(f"v_cvt_pk_bf16_f32 v{FR+i}, v{OACC+2*i}, v{OACC+2*i+1}")
    for i in range(8):
        A(f"v_min_u32 v{FR+i}, -2, v{FR+i}")
    for u in range(2):
        g.vm(f"buffer_store_dwordx4 {vr(FR+4*u,4)}, {vQST}, {sWS}, 0 offen offset:{1024*u} sc1", "QST")
    g.lab("L_common"); g.paths = ["P", "N"]
    stamp("common")
    A(f"v_and_b32 {t0}, 31, v0"); A(f"v_and_b32 {t1}, 15, v0"); A(f"v_lshrrev_b32 {t2}, 5, v0"); A(f"v_xor_b32 {t1}, {t1}, {t2}")
    A(f"v_lshlrev_b32 {t1}, 4, {t1}"); A(f"v_lshl_add_u32 {t1}, {t0}, 8, {t1}")
    A(f"s_and_b32 {sT0}, {sW}, 1"); A(f"s_lshl_b32 {sT0}, {sT0}, 13"); A(f"v_add_u32 {vKR}, {sT0}, {t1}")
    A(f"v_bfe_u32 {t0}, v0, 4, 1"); A(f"v_lshlrev_b32 {t0}, 1, {t0}"); A(f"v_bfe_u32 {t1}, v0, 1, 1"); A(f"v_add_u32 {t0}, {t0}, {t1}")
    A(f"s_lshl_b32 {sT0}, {sW}, 2"); A(f"v_add_u32 {t0}, {sT0}, {t0}")
    A(f"v_bfe_u32 {t1}, v0, 2, 2"); A(f"v_lshlrev_b32 {t3}, 2, {t1}"); A(f"v_xor_b32 {t0}, {t0}, {t3}"); A(f"v_lshlrev_b32 {t0}, 4, {t0}")
    A(f"v_and_b32 {t3}, 1, v0"); A(f"v_lshl_add_u32 {t0}, {t3}, 3, {t0}")
    A(f"v_lshl_add_u32 {t1}, {t2}, 2, {t1}")
    A(f"v_lshl_add_u32 {vVR}, {t1}, 8, {t0}")
    A(f"s_mov_b32 {sC}, {hex(f32(math.log2(math.e)/math.sqrt(128.0)))}")
    A(f"v_mov_b32 {vMX}, 0xff800000"); A(f"v_mov_b32 {vL0}, 0"); A(f"v_mov_b32 {vL1}, 0")
    A(f"v_and_b32 {t0}, 7, v0"); A(f"v_and_b32 {t1}, 3, {t0}"); A(f"v_lshrrev_b32 {t3}, 2, {t0}"); A(f"v_lshlrev_b32 {t3}, 2, {t3}")
    vFA = vT[10]
    A(f"v_lshl_add_u32 {vFA}, {t1}, 6, {t3}")
    A(f"s_lshr_b32 {sT0}, {sBb}, 2"); A(f"s_lshl_b32 {sT0}, {sT0}, 2"); A(f"s_and_b32 {sT1}, {sHKV}, 3"); A(f"s_add_u32 {sT0}, {sT0}, {sT1}")
    A(f"s_lshr_b32 {sT1}, {sHKV}, 2"); A(f"s_lshl_b32 {sT1}, {sT1}, 1"); A(f"s_lshl_b32 {sT1}, 0x01010101, {sT1}")
    A(f"v_cmp_eq_u32 vcc, {sT0}, {t0}"); A(f"v_mov_b32 {t1}, {sT1}"); A("s_nop 0"); A(f"v_cndmask_b32 {vEXP}, 0, {t1}, vcc")

    def check_loop(load_fn, bad_fn, name):
        lo = g.new(name+"_ok"); lr = g.new(name+"_re")
        bad_fn(); A("s_nop 1"); A(f"s_cbranch_vccz {lo}")
        A(f"s_mov_b32 {sCNT}, 0")
        g.lab(lr)
        A("s_sleep 2")
        load_fn(raw=True); A("s_waitcnt vmcnt(0)")
        A(f"s_add_u32 {sCNT}, {sCNT}, 1"); A(f"s_cmp_gt_u32 {sCNT}, {spin}"); A(f"s_cbranch_scc1 {lo}")
        bad_fn(); A("s_nop 1"); A(f"s_cbranch_vccnz {lr}")
        g.lab(lo)
    def ld(line, tag, raw):
        if raw: A(line)
        else: g.vm(line, tag)
    def load_flags(raw=False): ld(f"buffer_load_dword {vFL}, {vFA}, {sDBG}, 0 offen sc1", "FL", raw)
    def load_flags2(raw=False): ld(f"buffer_load_dword {vFL}, {vFA}, {sDBG}, 0 offen offset:8 sc1", "FL", raw)
    def bad_flags():
        A(f"v_and_b32 {t0}, {vFL}, {vEXP}"); A(f"v_cmp_ne_u32 vcc, {t0}, {vEXP}")
    def load_q(raw=False):
        for s in range(8):
            if s == 4: A(f"s_add_u32 {sT0}, {sQOFF}, 4096")
            ld(f"buffer_load_dwordx4 {vr(QR+4*s,4)}, {vL16}, {sWS}, {sQOFF if s < 4 else sT0} offen offset:{1024*(s%4)} sc1", "Q", raw)
    def bad_regs(base, n):
        def f():
            A(f"v_max3_u32 {t0}, v{base}, v{base+1}, v{base+2}")
            i = 3
            while i+1 < n:
                A(f"v_max3_u32 {t0}, {t0}, v{base+i}, v{base+i+1}"); i += 2
            if i < n: A(f"v_max_u32 {t0}, {t0}, v{base+i}")
            A(f"v_cmp_eq_u32 vcc, -1, {t0}")
        return f
    def qk(hq):
        for s in range(8):
            cc = "0" if s == 0 else vr(SR+16*hq, 16)
            A(f"v_mfma_f32_32x32x16_bf16 {vr(SR+16*hq,16)}, {ar(32*hq+4*s,4)}, {vr(QR+4*s,4)}, {cc}")
    def mx(hq):
        for i in range(8): A(f"v_max3_f32 {vMX}, {vMX}, v{SR+16*hq+2*i}, v{SR+16*hq+2*i+1}")
    def expt(hq):
        b = SR+16*hq
        for r in range(16): A(f"v_fma_f32 v{b+r}, v{b+r}, {sC}, -{vMC}")
        for r in range(16): A(f"v_exp_f32 v{b+r}, v{b+r}")
        for i in range(8):
            A(f"v_add_f32 {vL0}, {vL0}, v{b+2*i}"); A(f"v_add_f32 {vL1}, {vL1}, v{b+2*i+1}")
            A(f"v_cvt_pk_bf16_f32 v{b+i}, v{b+2*i}, v{b+2*i+1}")
    def pwrite(tile):
        l = g.new("pw"); hq = tile >> 1
        A(f"s_cmp_{'ge' if (tile & 1) == 0 else 'lt'}_u32 {sW}, 2"); A(f"s_cbranch_scc1 {l}")
        for u in range(2):
            A(f"ds_write_b128 {vPW}, {vr(SR+16*hq+4*u,4)} offset:{(tile & 1)*4096 + 1024*u}")
        g.lab(l)
    vPW, vPR = vT[11], vT[12]
    A(f"s_and_b32 {sT0}, {sW}, 1"); A(f"s_lshl_b32 {sT0}, {sT0}, 11"); A(f"s_add_u32 {sT0}, {sT0}, {PBUF}")
    A(f"v_add_u32 {vPW}, {sT0}, {vL16}"); A(f"v_add_u32 {vPR}, {PBUF}, {vL16}")

    step_fl = a_flag; step_flc = a_flag + LA - 1; step_qc = step_flc + LA - 1
    assert step_qc <= 14
    qk_done = 0; mx_done = 0
    issued = LA
    for n in range(16):
        g.c(f"---- K step {n}")
        g.wait_vm(("T", n)); A("s_barrier")
        if n in (0, 4, 8, 12): stamp(f"K{n}")
        if n == 0: clears()
        if n == LA: set_flag(8)
        if n == step_fl: load_flags()
        if n == step_flc:
            g.wait_vm("FL"); check_loop(load_flags, bad_flags, "fl"); load_q()
        issue_kv(issued); issued += 1
        l = g.new("kr")
        A(f"s_cmp_{'ge' if (n & 1) == 0 else 'lt'}_u32 {sW}, 2"); A(f"s_cbranch_scc1 {l}")
        A(f"v_add_u32 {t0}, {slot_of(('T', n))*SLOT}, {vKR}")
        for s in range(8):
            if s == 0: A(f"ds_read_b128 {ar(32*(n>>1), 4)}, {t0}")
            else:
                A(f"v_xor_b32 {vT[1+(s&1)]}, {32*s}, {t0}"); A(f"ds_read_b128 {ar(32*(n>>1)+4*s, 4)}, {vT[1+(s&1)]}")
        g.lab(l)
        if n == step_qc:
            g.wait_vm("Q"); check_loop(load_q, bad_regs(QR, 32), "q"); stamp("Qok")
        if n >= step_qc:
            avail = n >> 1 if n < 15 else 7
            k = 0
            while qk_done < avail and (k < qk_per_step or n == 15):
                qk(qk_done); qk_done += 1; k += 1
                if mx_done < qk_done - 1: A("s_nop 3"); mx(mx_done); mx_done += 1
        A("s_waitcnt lgkmcnt(0)")
    qk(7); qk_done = 8
    A("s_nop 3")
    while mx_done < 7: mx(mx_done); mx_done += 1
    A("s_nop 11")
    mx(7)
    vXW, vXR = vT[13], vT[14]
    A(f"v_and_b32 {t0}, 31, v0"); A(f"v_lshlrev_b32 {t0}, 2, {t0}"); A(f"v_add_u32 {vXR}, {MISC}, {t0}")
    A(f"s_lshl_b32 {sT0}, {sW}, 7"); A(f"v_add_u32 {vXW}, {sT0}, {vXR}")
    A(f"v_mov_b32 {t1}, {vMX}"); A("s_nop 1"); A(f"v_permlane32_swap_b32 {vMX}, {t1}"); A(f"v_max_f32 {vMX}, {vMX}, {t1}")
    A(f"ds_write_b32 {vXW}, {vMX}"); A("s_waitcnt lgkmcnt(0)"); A("s_barrier")
    stamp("maxbar")
    issue_kv(issued); issued += 1
    A(f"ds_read2_b32 v[18:19], {vXR} offset0:0 offset1:32"); A(f"ds_read2_b32 v[20:21], {vXR} offset0:64 offset1:96")
    A("s_waitcnt lgkmcnt(0)")
    A(f"v_max3_f32 {vMX}, v18, v19, v20"); A(f"v_max_f32 {vMX}, {vMX}, v21"); A(f"v_mul_f32 {vMC}, {sC}, {vMX}")
    expt(0); pwrite(0); A("s_waitcnt lgkmcnt(0)")
    exp_done = 1
    A(f"s_lshl_b32 {sT0}, {sJ}, 2"); A(f"s_add_u32 {sT0}, {sT0}, {sW}"); A(f"s_mul_i32 {sT0}, {sT0}, {128*1152}")
    A(f"s_add_u32 s16, s40, {sT0}"); A("s_addc_u32 s17, s41, 0"); A(f"s_mov_b32 s18, {128*1152}"); A("s_mov_b32 s19, 0x20000")
    A(f"v_bfe_u32 {t0}, v0, 1, 3"); A(f"v_mul_u32_u24 {t0}, 1152, {t0}")
    A(f"v_lshrrev_b32 {t1}, 4, v0"); A(f"v_lshl_add_u32 {t0}, {t1}, 5, {t0}"); A(f"v_and_b32 {t1}, 1, v0"); A(f"v_lshl_add_u32 {t0}, {t1}, 4, {t0}")
    A(f"s_lshl_b32 {sT0}, {sCB}, 8"); A(f"v_add_u32 {vWO}, {sT0}, {t0}")
    A(f"v_lshrrev_b32 {t0}, 1, v0"); A(f"v_mul_u32_u24 {t0}, 1152, {t0}"); A(f"v_lshl_add_u32 {t0}, {t1}, 4, {t0}")
    A(f"s_lshl_b32 {sT0}, {sCB}, 5"); A(f"s_add_u32 {sT0}, {sT0}, 1024"); A(f"v_add_u32 {vWOX}, {sT0}, {t0}")
    A(f"v_and_b32 {t0}, 15, v0"); A(f"v_lshlrev_b32 {t0}, 3, {t0}")
    A(f"v_bfe_u32 {t1}, v0, 4, 1"); A(f"v_lshl_add_u32 {t0}, {t1}, 7, {t0}")
    A(f"v_lshrrev_b32 {t1}, 5, v0")
    A(f"v_lshl_add_u32 {vWR}, {t1}, 11, {t0}"); A(f"v_lshl_add_u32 {vWRX}, {t1}, 9, {t0}")
    A(f"v_add_u32 {vWR}, {sW4K}, {vWR}"); A(f"v_add_u32 {vWRX}, {sW4K}, {vWRX}")
    def issue_wo(tau, slot):
        for i in range(4):
            A(f"s_add_u32 m0, {sW4K}, {slot*SLOT + 1024*i}")
            if tau < 8:
                A(f"s_mov_b32 {sOFF}, {(32*(tau>>1) + 8*i)*1152 + 128*(tau&1)}")
                g.vm(f"buffer_load_dwordx4 {vWO}, {sA}, {sOFF} offen {wpol} lds", ("WO", tau))
            else:
                A(f"s_mov_b32 {sOFF}, {32*i*1152}")
                g.vm(f"buffer_load_dwordx4 {vWOX}, {sA}, {sOFF} offen {wpol} lds", ("WO", tau))
    def read_wo(tau, slot):
        if tau < 8:
            A(f"v_add_u32 {t0}, {slot*SLOT}, {vWR}")
            for nl in range(4):
                nu = 4*(tau & 1) + nl; d = (nu*4 + (tau >> 1))*4
                for a in range(2): A(f"ds_read_b64_tr_b16 {ar(d+2*a, 2)}, {t0} offset:{1024*a + 256*nl}")
        else:
            A(f"v_add_u32 {t0}, {slot*SLOT}, {vWRX}")
            for ks in range(4):
                d = (8*4 + ks)*4
                for a in range(2): A(f"ds_read_b64_tr_b16 {ar(d+2*a, 2)}, {t0} offset:{1024*ks + 256*a}")
    A(f"s_xor_b32 {sPART}, {sKEY}, 2"); A(f"s_mul_i32 {sPART}, {sPART}, {AREA}"); A(f"s_add_u32 {sPART}, {sPART}, {WS_AREA + A_ML}")
    vMLA = vT[15]
    A(f"v_and_b32 {t0}, 31, v0"); A(f"v_lshlrev_b32 {vMLA}, 3, {t0}")
    def load_ml(raw=False): ld(f"buffer_load_dwordx2 v[46:47], {vMLA}, {sWS}, {sPART} offen sc1", "ML", raw)
    def bad_ml():
        A(f"v_max_u32 {t0}, v46, v47"); A(f"v_cmp_eq_u32 vcc, -1, {t0}")
    vXC = 36
    def load_x(raw=False):
        A(f"s_andn2_b32 {sT0}, {sKEY}, 3"); A(f"s_lshl_b32 {sT0}, {sT0}, 2"); A(f"s_add_u32 {sT0}, {sT0}, {WS_XCC}")
        ld(f"buffer_load_dwordx4 v[{vXC}:{vXC+3}], {vZ}, {sWS}, {sT0} offen sc1", "XC", raw)

    st_lw = 4
    st_fl2 = 1; st_fl2c = st_fl2 + LA - 1
    st_mll = 16 - 2*1 - (LA - 1) - 1
    st_mlc = st_mll + LA - 1
    wo_slot = {t: slot_of(("WO", t)) for t in range(9)}
    for t in range(16):
        n = 16 + t
        g.c(f"---- V step {t}")
        g.wait_vm(("T", n))
        A("s_barrier")
        if t in (0, 8, 15): stamp(f"V{t}")
        if t == st_fl2:
            A(f"v_mov_b32 {vEXP}, -1"); load_flags2()
        if t == st_fl2c:
            g.wait_vm("FL"); check_loop(load_flags2, bad_flags, "fl2"); load_x()
        if t == st_lw + 1:
            A(f"ds_read2_b32 v[18:19], {vXR} offset0:128 offset1:160"); A(f"ds_read2_b32 v[20:21], {vXR} offset0:192 offset1:224")
            A("s_waitcnt lgkmcnt(0)")
            A(f"v_add_f32 v18, v18, v19"); A(f"v_add_f32 v20, v20, v21"); A(f"v_add_f32 v45, v18, v20"); A(f"v_min_u32 v44, -2, {vMC}"); A("v_min_u32 v45, -2, v45")
            A(f"s_add_u32 {sT0}, {sAREA}, {A_ML}")
            g.vm(f"buffer_store_dwordx2 v[44:45], {vMLA}, {sWS}, {sT0} offen sc1", "MLS")
        if t == st_mll: load_ml()
        free_upto = rpos[("T", n-1)]
        lim = rpos[("T", n)] + LA
        if t == 15: lim = -1
        while issued < len(ring) and issued <= lim and issued - NSLOT <= free_upto:
            e = ring[issued]; issued += 1
            if e[0] == "T": issue_kv(e[1])
            else: issue_wo(e[1], slot_of(e))
        A(f"v_add_u32 {t0}, {slot_of(('T', n))*SLOT}, {vVR}")
        for u in range(4):
            A(f"ds_read_b128 {vr(FR+8*u+4,4)}, {vPR} offset:{(t & 1)*4096 + 1024*u}")
            for a in range(2): A(f"ds_read_b64_tr_b16 {vr(FR+8*u+2*a,2)}, {t0} offset:{4096*u + 2048*a}")
        for u in range(4):
            A(f"s_waitcnt lgkmcnt({3*(3-u)})")
            cc = "0" if (t == 0 and u == 0) else vr(OACC, 16)
            A(f"v_mfma_f32_32x32x16_bf16 {vr(OACC,16)}, {vr(FR+8*u,4)}, {vr(FR+8*u+4,4)}, {cc}")
        for k, te in enumerate(early):
            if t == te: read_wo(k, wo_slot[k])
        k = 0
        while exp_done < 8 and k < 2: expt(exp_done); exp_done += 1; k += 1
        if t < 15: pwrite(t + 1)
        if t == st_lw:
            assert exp_done == 8
            A(f"v_add_f32 {vL0}, {vL0}, {vL1}"); A(f"v_mov_b32 {vL1}, {vL0}"); A("s_nop 1"); A(f"v_permlane32_swap_b32 {vL0}, {vL1}")
            A(f"v_add_f32 {vL0}, {vL0}, {vL1}"); A(f"ds_write_b32 {vXW}, {vL0} offset:512")
        if t == st_fl2c + LA - 1:
            g.wait_vm("XC")
            A(f"v_xor_b32 v{vXC}, {sSAME}, v{vXC}"); A(f"v_xor_b32 v{vXC+1}, {sSAME}, v{vXC+1}"); A(f"v_xor_b32 v{vXC+2}, {sSAME}, v{vXC+2}"); A(f"v_xor_b32 v{vXC+3}, {sSAME}, v{vXC+3}")
            A(f"v_or3_b32 v{vXC}, v{vXC}, v{vXC+1}, v{vXC+2}"); A(f"v_or_b32 v{vXC}, v{vXC}, v{vXC+3}"); A("s_nop 0")
            A(f"v_readfirstlane_b32 {sSAME}, v{vXC}")
        if t == st_mlc:
            g.wait_vm("ML"); check_loop(load_ml, bad_ml, "ml")
            A(f"v_max_f32 {t1}, v44, v46"); A(f"v_sub_f32 {t2}, v44, {t1}"); A(f"v_sub_f32 {t3}, v46, {t1}")
            A(f"v_exp_f32 {t2}, {t2}"); A(f"v_exp_f32 {t3}, {t3}"); A("s_nop 0")
            A(f"v_mul_f32 {t1}, {t2}, v45"); A(f"v_fma_f32 {t1}, {t3}, v47, {t1}"); A(f"v_rcp_f32 {t1}, {t1}"); A("s_nop 0")
            A(f"v_mul_f32 {vSC}, {t2}, {t1}")
        if t < 15: A("s_waitcnt lgkmcnt(0)")
    vOS, vOL = vT[16], vT[17]
    A(f"s_lshl_b32 {sT0}, {sW}, 11"); A(f"s_add_u32 {sT0}, {sT0}, {sAREA}")
    A(f"v_and_b32 {t0}, 15, v0"); A(f"v_bfe_u32 {t1}, v0, 4, 1"); A(f"v_lshl_add_u32 {t0}, {t1}, 5, {t0}"); A(f"v_lshlrev_b32 {t0}, 4, {t0}")
    A(f"v_lshrrev_b32 {t1}, 5, v0"); A(f"v_lshl_add_u32 {t0}, {t1}, 10, {t0}")
    A(f"s_and_b32 {sT1}, {sW}, 1"); A(f"s_lshl_b32 {sT1}, {sT1}, 8"); A(f"v_add_u32 {vOL}, {sT1}, {t0}")
    A(f"s_andn2_b32 {sT1}, {sKEY}, 3"); A(f"s_lshr_b32 {sT2}, {sW}, 1"); A(f"s_add_u32 {sT1}, {sT1}, {sT2}")
    A(f"s_mul_i32 {sT1}, {sT1}, {AREA}"); A(f"s_add_u32 {sQS1}, {sT1}, {WS_AREA}"); A(f"s_add_u32 {sQS2}, {sQS1}, {2*AREA}")
    for r in range(16): A(f"v_mul_f32 v{OACC+r}, v{OACC+r}, {vSC}")
    for i in range(8): A(f"v_cvt_pk_bf16_f32 v{FR+i}, v{OACC+2*i}, v{OACC+2*i+1}")
    for i in range(8): A(f"v_min_u32 v{FR+i}, -2, v{FR+i}")
    l1 = g.new("os"); l2 = g.new("os")
    A(f"s_cmp_eq_u32 {sSAME}, 0"); A(f"s_cbranch_scc1 {l1}")
    for u in range(2): A(f"buffer_store_dwordx4 {vr(FR+4*u,4)}, {vL16}, {sWS}, {sT0} offen offset:{1024*u} sc1")
    A(f"s_branch {l2}")
    g.lab(l1)
    for u in range(2): g.vm(f"buffer_store_dwordx4 {vr(FR+4*u,4)}, {vL16}, {sWS}, {sT0} offen offset:{1024*u}", "OST")
    g.lab(l2)
    stamp("Opub")
    while issued < len(ring):
        assert issued - NSLOT <= rpos[("T", 30)]
        e = ring[issued]; issued += 1; issue_wo(e[1], slot_of(e))
    def load_o(raw=False):
        for s in range(2):
            for ks in range(4):
                if ks == 2: A(f"s_add_u32 {sT1}, {sQS1 if s == 0 else sQS2}, 4096")
                so = (sQS1 if s == 0 else sQS2) if ks < 2 else sT1
                ld(f"buffer_load_dwordx4 {vr(QR+16*s+4*ks,4)}, {vOL}, {sWS}, {so} offen offset:{2048*(ks%2)} sc1", "O", raw)
    load_o()
    for tau in range(len(early), 9):
        g.wait_vm(("WO", tau)); read_wo(tau, wo_slot[tau])
    g.wait_vm("O"); check_loop(load_o, bad_regs(QR, 32), "o")
    stamp("Ook")
    A("s_waitcnt lgkmcnt(0)")
    Y = SR
    vYW, vYR = vT[18], vT[19]
    A(f"v_add_u32 {vYW}, {sW4K}, {vL16}")
    ysl = [wo_slot[6], wo_slot[7], wo_slot[8]]
    def yaddr(nu): return ysl[nu >> 2]*SLOT + (nu & 3)*1024
    pend = None
    for nu in range(9):
        for s in range(2):
            for ks in range(4):
                cc = "0" if (s == 0 and ks == 0) else vr(Y+4*nu, 4)
                A(f"v_mfma_f32_16x16x32_bf16 {vr(Y+4*nu,4)}, {ar((nu*4+ks)*4,4)}, {vr(QR+16*s+4*ks,4)}, {cc}")
        if nu > 0:
            A(f"v_add_u32 {t0}, {yaddr(nu-1) & ~0xffff if False else ysl[(nu-1) >> 2]*SLOT}, {vYW}")
            A(f"ds_write_b128 {t0}, {vr(Y+4*(nu-1),4)} offset:{((nu-1) & 3)*1024}")
    A(f"v_add_u32 {t0}, {ysl[2]*SLOT}, {vYW}"); A("s_nop 6")
    A(f"ds_write_b128 {t0}, {vr(Y+32,4)}")
    A(f"s_lshr_b32 {sT0}, {sW}, 1"); A(f"s_cmp_eq_u32 {sT0}, 0"); csel(sT0, ysl[0]*SLOT, ysl[1]*SLOT)
    A(f"s_and_b32 {sT1}, {sW}, 1"); A(f"s_lshl_b32 {sT1}, {sT1}, 11"); A(f"s_add_u32 {sT0}, {sT0}, {sT1}")
    A(f"v_add_u32 {vYR}, {sT0}, {vL16}")
    vYS = vT[20]
    A(f"v_bfe_u32 {t1}, v0, 1, 3"); A(f"v_mul_u32_u24 {t1}, 1152, {t1}"); A(f"v_and_b32 {t2}, 1, v0"); A(f"v_lshl_add_u32 {t1}, {t2}, 6, {t1}")
    A(f"v_lshrrev_b32 {t2}, 4, v0"); A(f"v_lshl_add_u32 {vYS}, {t2}, 4, {t1}")
    A(f"s_lshl_b32 {sT2}, {sW}, 8"); A(f"s_add_u32 {sT2}, {sT2}, {sAREA}"); A(f"s_add_u32 {sT2}, {sT2}, {A_Y}")
    A("s_waitcnt lgkmcnt(0)"); A("s_barrier")
    R = SR + 40
    for k in range(2):
        for w in range(4): A(f"ds_read_b128 {vr(R+16*k+4*w,4)}, {vYR} offset:{4096*w + 1024*k}")
    def sum4(base):
        for i in range(4): A(f"v_add_f32 v{base+i}, v{base+i}, v{base+4+i}")
        for i in range(4): A(f"v_add_f32 v{base+8+i}, v{base+8+i}, v{base+12+i}")
        for i in range(4): A(f"v_add_f32 v{base+i}, v{base+i}, v{base+8+i}")
        for i in range(4): A(f"v_min_u32 v{base+i}, -2, v{base+i}")
    for k in range(2):
        A(f"s_waitcnt lgkmcnt({4*(1-k)})"); sum4(R+16*k)
        A(f"buffer_store_dwordx4 {vr(R+16*k,4)}, {vYS}, {sWS}, {sT2} offen offset:{128*k} sc1")
    stamp("Ypub")
    A(f"s_cmp_ge_u32 {sW}, 2"); A("s_cbranch_scc1 L_fin")
    l = g.new("t8")
    A(f"s_cmp_eq_u32 {sW}, 0"); A(f"s_cbranch_scc1 {l}")
    A(f"v_add_u32 {t0}, {ysl[2]*SLOT}, {vL16}")
    for w in range(4): A(f"ds_read_b128 {vr(R+32+4*w,4)}, {t0} offset:{4096*w}")
    A(f"s_add_u32 {sT2}, {sAREA}, {A_Y + 1024}")
    A("s_waitcnt lgkmcnt(0)"); sum4(R+32)
    A(f"buffer_store_dwordx4 {vr(R+32,4)}, {vYS}, {sWS}, {sT2} offen sc1")
    g.lab(l)
    vT2 = vT[21]
    A(f"v_and_b32 {t0}, 7, v0"); A(f"v_add_u32 {t0}, 64, {t0}"); A(f"s_cmp_eq_u32 {sW}, 0"); A("s_cselect_b64 vcc, -1, 0"); A("s_nop 0")
    A(f"v_cndmask_b32 {vT2}, {t0}, v0, vcc")
    A(f"v_lshlrev_b32 {t1}, 4, {vT2}")
    A(f"s_mul_i32 {sT0}, {sR}, {AREA}"); A(f"s_mul_i32 {sT1}, {sJ}, 1152"); A(f"s_add_u32 {sT0}, {sT0}, {sT1}"); A(f"s_add_u32 {sQS1}, {sT0}, {WS_AREA + A_Y}")
    H = QR
    def load_y(raw=True):
        A(f"s_mov_b32 {sT0}, {sQS1}")
        for j in range(8):
            A(f"buffer_load_dwordx4 {vr(H+4*j,4)}, {t1}, {sWS}, {sT0} offen sc1")
            if j < 7: A(f"s_add_u32 {sT0}, {sT0}, {32*AREA}")
    load_y()
    A(f"s_add_u32 s20, s42, 0"); A("s_addc_u32 s21, s43, 0"); A(f"s_mov_b32 s22, {128*1152}"); A("s_mov_b32 s23, 0x20000")
    A(f"s_lshl_b32 {sT2}, {sBb}, 4"); A(f"s_lshl_b32 {sT3}, {sJ}, 1"); A(f"s_add_u32 {sT2}, {sT2}, {sT3}"); A(f"s_mul_i32 {sT2}, {sT2}, 1152")
    A(f"s_lshl_b32 {sT3}, {sCB}, 8"); A(f"s_lshl_b32 {sOFF}, {sCB}, 5"); A(f"s_add_u32 {sOFF}, {sOFF}, {1024 - 256}")
    A(f"s_cmp_eq_u32 {sW}, 0"); A(f"s_cselect_b32 {sT3}, {sT3}, {sOFF}"); A(f"s_add_u32 {sT2}, {sT2}, {sT3}")
    A(f"v_bfe_u32 {t2}, {vT2}, 2, 1"); A(f"v_mul_u32_u24 {t2}, 1152, {t2}")
    A(f"v_lshrrev_b32 {t3}, 3, {vT2}"); A(f"v_lshl_add_u32 {t2}, {t3}, 5, {t2}"); A(f"v_and_b32 {t3}, 3, {vT2}"); A(f"v_lshl_add_u32 {t2}, {t3}, 3, {t2}")
    A("s_waitcnt vmcnt(0)")
    check_loop(load_y, bad_regs(H, 32), "y")
    for st in (4, 8, 16):
        for base in range(H, H+32, 2*st if st < 16 else 32):
            for i in range(4): A(f"v_add_f32 v{base+i}, v{base+i}, v{base+st+i}")
    A(f"v_cvt_pk_bf16_f32 v{H}, v{H}, v{H+1}"); A(f"v_cvt_pk_bf16_f32 v{H+1}, v{H+2}, v{H+3}")
    A(f"buffer_store_dwordx2 {vr(H,2)}, {t2}, {sB}, {sT2} offen {outpol}")
    g.lab("L_fin")
    if prof:
        if True:
            i = nstamp[0]
        A("s_waitcnt vmcnt(0)")
        stamp("end")
        ns = nstamp[0]
        A(f"s_lshl_b32 {sT0}, s2, 2"); A(f"s_add_u32 {sT0}, {sT0}, {sW}"); A(f"s_mul_i32 {sT0}, {sT0}, {8*ns}"); A(f"s_add_u32 {sT0}, {sT0}, {STAMP_OFF}")
        A(f"s_add_u32 s46, s46, {sT0}"); A("s_addc_u32 s47, s47, 0")
        A("v_mov_b32 v1, 0"); A("s_mov_b64 exec, 1")
        for j in range(ns):
            A(f"v_mov_b32 v2, s{ST0+2*j}"); A(f"v_mov_b32 v3, s{ST0+2*j+1}")
            A(f"global_store_dwordx2 v1, v[2:3], s[46:47] offset:{8*j}"); A("s_waitcnt vmcnt(0)")
        sys.stderr.write(f"nstamps={ns}\n")
    g.lab("L_end"); g.L.append("s_endpgm")
    g.L += ['.section .rodata,"a"', ".p2align 6", f".amdhsa_kernel {KN}",
            "  .amdhsa_next_free_vgpr 512", "  .amdhsa_next_free_sgpr 102", "  .amdhsa_accum_offset 256",
            "  .amdhsa_group_segment_fixed_size 0", "  .amdhsa_kernarg_size 64", "  .amdhsa_user_sgpr_count 2",
            "  .amdhsa_user_sgpr_kernarg_segment_ptr 1", "  .amdhsa_system_sgpr_workgroup_id_x 1",
            "  .amdhsa_float_denorm_mode_32 3", "  .amdhsa_float_denorm_mode_16_64 3", ".end_amdhsa_kernel"]
    return "\n".join(g.L) + "\n"

if __name__ == "__main__":
    import argparse
    ap = argparse.ArgumentParser(); ap.add_argument("out"); ap.add_argument("--prof", action="store_true"); ap.add_argument("--la", type=int, default=5)
    a = ap.parse_args()
    open(a.out, "w").write(gen(LA=a.la, prof=a.prof))
```

```python
import sys, math, struct
KN = "standalone__sliding_block_cached__sampling_kernel"

HEADER = """; Kernarg layout for this problem (64 bytes, ptrs only, base s[0:1]):
"""

SLOT = 16384
NSLOT = 9
PBUF = NSLOT*SLOT
MISC = PBUF + 8192
LDS_BYTES = 163840
WS_Q = 0
WS_XCC = 0x100000
WS_AREA = 0x200000
AREA = 20480
A_O = 0
A_Y = 8192
A_ML = 8192+9216
A_END = A_ML + 256
WS_SIZE = 0x800000
STAMP_OFF = 512 << 20

class G:
    def __init__(s):
        s.L = []; s.q = {"P": [], "N": []}; s.paths = ["P", "N"]; s.nlab = 0
    def __call__(s, line): s.L.append("    " + line)
    def lab(s, name): s.L.append(name + ":")
    def c(s, t): s.L.append("    ; " + t)
    def new(s, base):
        s.nlab += 1; return f"L_{base}_{s.nlab}"
    def vm(s, line, tag):
        s(line)
        for p in s.paths: s.q[p].append(tag)
    def wait_vm(s, *tags):
        n = None
        for p in s.paths:
            q = s.q[p]
            idx = max([i for i, t in enumerate(q) if t in tags], default=None)
            if idx is None: continue
            k = len(q)-1-idx
            n = k if n is None else min(n, k)
        if n is None: return
        assert n <= 63
        s(f"s_waitcnt vmcnt({n})")
        for p in s.paths: s.q[p] = s.q[p][len(s.q[p])-n:] if n < len(s.q[p]) else s.q[p]
        if n == 0:
            for p in s.paths: s.q[p] = []
    def drain(s):
        s("s_waitcnt vmcnt(0)")
        for p in s.paths: s.q[p] = []

def f32(x): return struct.unpack("<I", struct.pack("<f", x))[0]

def gen(LA=5, prof=False, a_flag=3, kvpol="nt", wpol="nt", outpol="", spin=65536, qk_per_step=2, early=(8,), stamps=None, noclr=False, clrpol="sc1"):
    g = G(); A = g
    sW = "s3"
    sK, sV, sWS, sA, sB, sDBG = "s[4:7]", "s[8:11]", "s[12:15]", "s[16:19]", "s[20:23]", "s[24:27]"
    sJ, sR, sBb, sHKV, sCB, sKEY = "s28", "s29", "s30", "s31", "s48", "s49"
    sW4K, sOFF, sT0, sT1, sT2, sT3 = "s50", "s51", "s52", "s53", "s54", "s55"
    sC, sAREA, sSAME, sCNT, sQS1, sQS2 = "s56", "s57", "s58", "s59", "s60", "s61"
    sPART, sQOFF = "s62", "s63"
    ST0 = 64
    nstamp = [0]
    names = []
    def stamp(name):
        if not prof: return
        if stamps is not None and name not in stamps: return
        names.append(name)
        i = nstamp[0]; nstamp[0] += 1
        assert ST0+2*i+1 <= 101
        A(f"s_memrealtime s[{ST0+2*i}:{ST0+2*i+1}]"); A("s_waitcnt lgkmcnt(0)")
    vLANE = "v0"
    vK = ["v1", "v2", "v3", "v4"]; vV = "v5"; vKR = "v6"; vVR = "v7"; vL16 = "v8"
    vMX, vMC, vL0, vL1, vSC, vFL, vEXP, vZ = "v9", "v10", "v11", "v12", "v13", "v14", "v15", "v16"
    vT = [f"v{i}" for i in range(17, 40)]
    vWO, vWOX, vWR, vWRX, vML = "v40", "v41", "v42", "v43", (44, 45)
    FR = 48
    OACC = 80
    QR = 96
    SR = 128
    def vr(a, n): return f"v[{a}:{a+n-1}]"
    def ar(a, n): return f"a[{a}:{a+n-1}]"

    g.L.append(HEADER + f"; @launch grid=(256,1,1) block=(256,1,1) lds={LDS_BYTES}")
    g.L.append('.amdgcn_target "amdgcn-amd-amdhsa--gfx950"')
    g.L.append(".text"); g.L.append(f".globl {KN}"); g.L.append(".p2align 8"); g.L.append(f".type {KN},@function"); g.lab(KN)
    A("s_cmp_ge_u32 s2, 256"); A("s_cbranch_scc1 L_end")
    A("s_load_dwordx16 s[32:47], s[0:1], 0")
    if prof: A(f"s_memrealtime s[{ST0}:{ST0+1}]"); nstamp[0] = 1
    A("v_lshrrev_b32 v1, 6, v0")
    A(f"s_and_b32 {sJ}, s2, 7"); A(f"s_lshr_b32 {sR}, s2, 3")
    A(f"v_readfirstlane_b32 {sW}, v1")
    A("v_and_b32 v0, 63, v0")
    A(f"s_lshr_b32 {sBb}, {sR}, 2"); A(f"s_and_b32 {sCB}, {sR}, 3")
    A(f"s_and_b32 {sT0}, {sR}, 1"); A(f"s_lshl_b32 {sHKV}, {sJ}, 1"); A(f"s_or_b32 {sHKV}, {sHKV}, {sT0}")
    A(f"s_lshl_b32 {sKEY}, {sJ}, 5"); A(f"s_or_b32 {sKEY}, {sKEY}, {sR}")
    A(f"s_lshl_b32 {sW4K}, {sW}, 12")
    A(f"s_lshl_b32 {sT0}, {sBb}, 4"); A(f"s_or_b32 {sT0}, {sT0}, {sHKV}")
    A(f"s_lshl_b32 {sQOFF}, {sT0}, 13")
    A(f"s_lshl_b32 {sT0}, {sT0}, 21")
    A(f"s_lshr_b32 {sT1}, {sR}, 1"); A(f"s_and_b32 {sT1}, {sT1}, 1"); A(f"s_lshl_b32 {sT1}, {sT1}, 18")
    A(f"s_add_u32 {sT0}, {sT0}, {sT1}"); A(f"s_add_u32 {sT0}, {sT0}, {6144*256}"); A(f"s_add_u32 {sT0}, {sT0}, {sW4K}")
    A(f"s_mul_i32 {sAREA}, {sKEY}, {AREA}"); A(f"s_add_u32 {sAREA}, {sAREA}, {WS_AREA}")
    t0, t1, t2, t3 = vT[0], vT[1], vT[2], vT[3]
    A(f"v_lshrrev_b32 {t0}, 4, v0")
    A(f"v_and_b32 {t1}, 15, v0")
    A(f"v_lshlrev_b32 {t2}, 8, {t0}")
    for i in range(4):
        A(f"v_add_u32 {t3}, {4*i}, {t0}"); A(f"v_xor_b32 {t3}, {t3}, {t1}"); A(f"v_lshl_add_u32 {vK[i]}, {t3}, 4, {t2}")
    A(f"v_lshlrev_b32 {t3}, 2, {t0}"); A(f"v_xor_b32 {t3}, {t3}, {t1}"); A(f"v_lshl_add_u32 {vV}, {t3}, 4, {t2}")
    A(f"v_lshlrev_b32 {vL16}, 4, v0"); A(f"v_mov_b32 {vZ}, 0")
    A("s_waitcnt lgkmcnt(0)")
    A(f"s_add_u32 s4, s34, {sT0}"); A("s_addc_u32 s5, s35, 0"); A(f"s_sub_u32 s6, 262144, {sW4K}"); A("s_mov_b32 s7, 0x20000")
    A(f"s_add_u32 s8, s36, {sT0}"); A("s_addc_u32 s9, s37, 0"); A("s_mov_b32 s10, s6"); A("s_mov_b32 s11, 0x20000")
    A("s_mov_b32 s12, s46"); A("s_mov_b32 s13, s47"); A(f"s_mov_b32 s14, {WS_SIZE}"); A("s_mov_b32 s15, 0x20000")
    A("s_mov_b32 s24, s44"); A("s_mov_b32 s25, s45"); A("s_mov_b32 s26, 256"); A("s_mov_b32 s27, 0x20000")

    ring = []
    for n in range(32):
        for k, t in enumerate(early):
            if n == 16 + t: ring.append(("WO", k))
        ring.append(("T", n))
    ring += [("WO", t) for t in range(len(early), 9)]
    rpos = {e: i for i, e in enumerate(ring)}
    def slot_of(e): return rpos[e] % NSLOT
    def issue_kv(n):
        sl = slot_of(("T", n))*SLOT
        A(f"s_add_u32 m0, {sW4K}, {sl}")
        A(f"s_mov_b32 {sOFF}, {(n % 16)*SLOT}")
        for i in range(4):
            if n < 16: g.vm(f"buffer_load_dwordx4 {vK[i]}, {sK}, {sOFF} offen offset:{1024*i} {kvpol} lds", ("T", n))
            else:      g.vm(f"buffer_load_dwordx4 {vV}, {sV}, {sOFF} offen offset:{1024*i} {kvpol} lds", ("T", n))
    def csel(dst, a, b):
        A(f"s_mov_b32 {dst}, {b}"); A(f"s_cselect_b32 {dst}, {a}, {dst}")
    def clears():
        for r in range(FR, FR+4): A(f"v_mov_b32 v{r}, -1")
        A(f"s_lshl_b32 {sT1}, {sW}, 10"); A(f"v_add_u32 {vT[3]}, {sT1}, {vL16}")
        for rnd in range(4):
            A(f"s_add_u32 {sT2}, {sAREA}, {4096*rnd}")
            g.vm(f"buffer_store_dwordx4 {vr(FR,4)}, {vT[3]}, {sWS}, {sT2} offen {clrpol}", "CLR")
        A(f"v_min_u32 {vT[2]}, {A_END-16384-16}, {vT[3]}")
        A(f"s_add_u32 {sT2}, {sAREA}, {16384}")
        g.vm(f"buffer_store_dwordx4 {vr(FR,4)}, {vT[2]}, {sWS}, {sT2} offen {clrpol}", "CLR")
        A(f"s_getreg_b32 {sT1}, hwreg(HW_REG_XCC_ID)"); A(f"s_and_b32 {sSAME}, {sT1}, 15")
        A(f"s_lshl_b32 {sT2}, {sKEY}, 2"); A(f"s_add_u32 {sT2}, {sT2}, {WS_XCC}")
        A(f"v_mov_b32 {vT[1]}, {sSAME}")
        g.vm(f"buffer_store_dword {vT[1]}, {vZ}, {sWS}, {sT2} offen {clrpol}", "CLR")
    def set_flag(off):
        l = g.new("nf")
        A(f"s_cmp_lg_u32 {sW}, 0"); A(f"s_cbranch_scc1 {l}")
        A(f"s_lshr_b32 {sT0}, s2, 5"); A(f"s_and_b32 {sT1}, {sT0}, 3"); A(f"s_lshl_b32 {sT1}, {sT1}, 6")
        A(f"s_lshr_b32 {sT0}, {sT0}, 2"); A(f"s_lshl_b32 {sT0}, {sT0}, 2"); A(f"s_add_u32 {sT0}, {sT0}, {sT1}")
        A(f"s_and_b32 {sT1}, s2, 31"); A(f"s_lshl_b32 {sT1}, 1, {sT1}")
        A(f"v_mov_b32 {vT[0]}, {sT1}")
        A("s_mov_b64 exec, 1")
        A(f"buffer_atomic_or {vT[0]}, {vZ}, {sDBG}, {sT0} offen offset:{off} sc1")
        A("s_mov_b64 exec, -1")
        g.lab(l)

    A(f"s_and_b32 {sT0}, {sJ}, 1"); A(f"s_cmp_eq_u32 {sT0}, 0"); A("s_cbranch_scc1 L_prod")
    g.paths = ["N"]
    for n in range(LA): issue_kv(n)
    sv = nstamp[0]
    for p in range(9): stamp(f"QP{p}")
    nstamp[0] = sv; del names[sv-1:]
    A("s_branch L_common")
    g.lab("L_prod"); g.paths = ["P"]
    sCQ, sRG = sT3, sPART
    vQA, vQB, vD0, vD1, vQST = vT[5], vT[6], vT[7], vT[8], vT[9]
    A(f"s_lshr_b32 {sT0}, {sJ}, 1"); A(f"s_lshl_b32 {sT0}, {sT0}, 4"); A(f"s_and_b32 {sT1}, {sR}, 15"); A(f"s_or_b32 {sCQ}, {sT0}, {sT1}")
    A(f"s_lshr_b32 {sRG}, {sR}, 4")
    A(f"s_and_b32 {sT0}, {sW}, 1")
    A(f"s_mul_i32 {sT1}, {sT0}, {32*8192}"); A(f"s_lshl_b32 {sT2}, {sCQ}, 7"); A(f"s_add_u32 {sT1}, {sT1}, {sT2}")
    A(f"s_lshl_b32 {sT2}, {sRG}, 1"); A(f"s_add_u32 {sT2}, {sT2}, {sT0}"); A(f"s_mul_i32 {sT2}, {sT2}, {32*1152}")
    A(f"s_cmp_lt_u32 {sW}, 2")
    A(f"s_cselect_b32 {sT1}, {sT1}, {sT2}")
    A("s_cselect_b32 s16, s38, s32"); A("s_cselect_b32 s17, s39, s33")
    csel("s18", 576*8192, 128*1152)
    csel(sQS1, 8*8192, 8*1152)
    csel(sQS2, 64*8192 - 4*8*8192, (128 - 4*8*1152) & 0xffffffff)
    csel(sT2, 8192, 1152)
    A(f"s_sub_u32 s18, s18, {sT1}")
    A(f"s_add_u32 s16, s16, {sT1}"); A("s_addc_u32 s17, s17, 0"); A("s_mov_b32 s19, 0x20000")
    A(f"v_lshrrev_b32 {t0}, 3, v0")
    A(f"v_and_b32 {t1}, 7, v0")
    A(f"v_mul_lo_u32 {t2}, {t0}, {sT2}")
    A(f"v_lshrrev_b32 {t0}, 1, {t0}")
    A(f"v_and_b32 {t3}, 1, {t0}"); A(f"v_lshlrev_b32 {t3}, 2, {t3}")
    A(f"s_cmp_lt_u32 {sW}, 2"); A("s_cselect_b64 vcc, -1, 0")
    A(f"v_add_u32 {vD1}, 4, {t0}")
    A(f"v_cndmask_b32 {vD0}, {t0}, {t3}, vcc"); A(f"v_cndmask_b32 {vD1}, {vD1}, {t3}, vcc")
    A(f"v_xor_b32 {vD0}, {vD0}, {t1}"); A(f"v_xor_b32 {vD1}, {vD1}, {t1}")
    A(f"v_lshl_add_u32 {vD0}, {vD0}, 4, {t2}"); A(f"v_lshl_add_u32 {vD1}, {vD1}, 4, {t2}")
    A(f"s_lshl_b32 {sT0}, {sRG}, 2"); A(f"s_and_b32 {sT1}, {sW}, 2"); A(f"s_add_u32 {sT0}, {sT0}, {sT1}")
    A(f"s_lshl_b32 {sT0}, {sT0}, 4"); A(f"s_lshr_b32 {sT1}, {sCQ}, 2"); A(f"s_add_u32 {sT0}, {sT0}, {sT1}"); A(f"s_lshl_b32 {sT0}, {sT0}, 13")
    A(f"s_and_b32 {sT1}, {sCQ}, 1"); A(f"s_lshl_b32 {sT1}, {sT1}, 12"); A(f"s_add_u32 {sT0}, {sT0}, {sT1}")
    A(f"s_and_b32 {sT1}, {sW}, 1"); A(f"s_lshl_b32 {sT1}, {sT1}, 11"); A(f"s_add_u32 {sT0}, {sT0}, {sT1}")
    A(f"s_and_b32 {sT1}, {sCQ}, 2"); A(f"s_lshl_b32 {sT1}, {sT1}, 7"); A(f"s_add_u32 {sT0}, {sT0}, {sT1}")
    A(f"v_bfe_u32 {t0}, v0, 4, 1"); A(f"v_lshlrev_b32 {t0}, 17, {t0}")
    A(f"v_lshrrev_b32 {t1}, 5, v0"); A(f"v_lshl_add_u32 {t0}, {t1}, 9, {t0}")
    A(f"v_and_b32 {t1}, 15, v0"); A(f"v_lshl_add_u32 {t0}, {t1}, 4, {t0}")
    A(f"v_add_u32 {vQST}, {sT0}, {t0}")
    for r in range(FR, FR+4): A(f"v_mov_b32 v{r}, -1")
    for u in range(2):
        g.vm(f"buffer_store_dwordx4 {vr(FR,4)}, {vQST}, {sWS}, 0 offen offset:{1024*u} {clrpol}", "CLRQ")
    qoff_state = [0]
    def issue_qp(p):
        for i in range(4):
            A(f"s_add_u32 m0, {sW4K}, {p*SLOT + 1024*i}")
            if p == 0 and i == 0: A(f"s_mov_b32 {sCNT}, 0")
            elif i == 0: A(f"s_add_u32 {sCNT}, {sCNT}, {sQS2}"); A(f"s_add_u32 {sCNT}, {sCNT}, {sQS1}")
            else: A(f"s_add_u32 {sCNT}, {sCNT}, {sQS1}")
            g.vm(f"buffer_load_dwordx4 {vD0 if i % 2 == 0 else vD1}, {sA}, {sCNT} offen {wpol} lds", ("QP", p))
    for p in range(LA): issue_qp(p)
    A(f"v_lshrrev_b32 {t0}, 4, v0")
    A(f"v_and_b32 {t1}, 3, v0")
    A(f"v_bfe_u32 {t2}, v0, 2, 2")
    A(f"v_and_b32 {t3}, 1, {t0}"); A(f"v_lshlrev_b32 {t3}, 1, {t3}")
    A(f"v_and_b32 {vQA}, 1, {t1}"); A(f"v_add_u32 {t3}, {t3}, {vQA}")
    A(f"s_and_b32 {sT0}, {sW}, 1"); A(f"s_lshl_b32 {sT0}, {sT0}, 2"); A(f"v_add_u32 {t3}, {sT0}, {t3}")
    A(f"v_lshrrev_b32 {vQA}, 1, {t2}"); A(f"v_lshlrev_b32 {vQA}, 2, {vQA}"); A(f"v_xor_b32 {t3}, {t3}, {vQA}")
    A(f"v_lshlrev_b32 {t3}, 4, {t3}")
    A(f"v_lshrrev_b32 {t1}, 1, {t1}"); A(f"v_lshl_add_u32 {t3}, {t1}, 3, {t3}")
    A(f"v_lshrrev_b32 {t0}, 1, {t0}"); A(f"v_lshl_add_u32 {t2}, {t0}, 3, {t2}")
    A(f"v_lshl_add_u32 {vQA}, {t2}, 7, {t3}")
    A(f"v_and_b32 {t0}, 31, v0"); A(f"v_bfe_u32 {t1}, v0, 1, 3"); A(f"v_lshrrev_b32 {t2}, 5, v0"); A(f"v_xor_b32 {t1}, {t1}, {t2}")
    A(f"v_lshlrev_b32 {t1}, 4, {t1}"); A(f"v_lshl_add_u32 {t1}, {t0}, 7, {t1}")
    A(f"s_lshr_b32 {sT0}, {sW}, 1"); A(f"s_lshl_b32 {sT0}, {sT0}, 12"); A(f"s_add_u32 {sT0}, {sT0}, 8192")
    A(f"v_add_u32 {vQB}, {sT0}, {t1}")
    for p in range(9):
        g.c(f"---- Qproj step {p}")
        g.wait_vm(("QP", p)); A("s_barrier"); stamp(f"QP{p}")
        if p == 0: set_flag(0)
        nx = p + LA
        if nx < 9: issue_qp(nx)
        else: issue_kv(nx - 9)
        A(f"v_add_u32 {t0}, {p*SLOT}, {vQA}"); A(f"v_add_u32 {t1}, {p*SLOT}, {vQB}")
        for u in range(4):
            A(f"ds_read_b64_tr_b16 {vr(FR+8*u, 2)}, {t0} offset:{2048*u}")
            A(f"ds_read_b64_tr_b16 {vr(FR+8*u+2, 2)}, {t0} offset:{2048*u+512}")
            if u == 0: A(f"ds_read_b128 {vr(FR+8*u+4, 4)}, {t1}")
            else:
                A(f"v_xor_b32 {t2}, {32*u}, {t1}"); A(f"ds_read_b128 {vr(FR+8*u+4, 4)}, {t2}")
        for u in range(4):
            A(f"s_waitcnt lgkmcnt({3*(3-u)})")
            cc = "0" if (p == 0 and u == 0) else vr(OACC, 16)
            A(f"v_mfma_f32_32x32x16_bf16 {vr(OACC,16)}, {vr(FR+8*u,4)}, {vr(FR+8*u+4,4)}, {cc}")
    A("s_nop 11")
    for i in range(8):
        A(f"v_cvt_pk_bf16_f32 v{FR+i}, v{OACC+2*i}, v{OACC+2*i+1}")
    for i in range(8):
        A(f"v_min_u32 v{FR+i}, -2, v{FR+i}")
    for u in range(2):
        g.vm(f"buffer_store_dwordx4 {vr(FR+4*u,4)}, {vQST}, {sWS}, 0 offen offset:{1024*u} sc1", "QST")
    g.lab("L_common"); g.paths = ["P", "N"]
    stamp("common")
    A(f"v_and_b32 {t0}, 31, v0"); A(f"v_and_b32 {t1}, 15, v0"); A(f"v_lshrrev_b32 {t2}, 5, v0"); A(f"v_xor_b32 {t1}, {t1}, {t2}")
    A(f"v_lshlrev_b32 {t1}, 4, {t1}"); A(f"v_lshl_add_u32 {t1}, {t0}, 8, {t1}")
    A(f"s_and_b32 {sT0}, {sW}, 1"); A(f"s_lshl_b32 {sT0}, {sT0}, 13"); A(f"v_add_u32 {vKR}, {sT0}, {t1}")
    A(f"v_bfe_u32 {t0}, v0, 4, 1"); A(f"v_lshlrev_b32 {t0}, 1, {t0}"); A(f"v_bfe_u32 {t1}, v0, 1, 1"); A(f"v_add_u32 {t0}, {t0}, {t1}")
    A(f"s_lshl_b32 {sT0}, {sW}, 2"); A(f"v_add_u32 {t0}, {sT0}, {t0}")
    A(f"v_bfe_u32 {t1}, v0, 2, 2"); A(f"v_lshlrev_b32 {t3}, 2, {t1}"); A(f"v_xor_b32 {t0}, {t0}, {t3}"); A(f"v_lshlrev_b32 {t0}, 4, {t0}")
    A(f"v_and_b32 {t3}, 1, v0"); A(f"v_lshl_add_u32 {t0}, {t3}, 3, {t0}")
    A(f"v_lshl_add_u32 {t1}, {t2}, 2, {t1}")
    A(f"v_lshl_add_u32 {vVR}, {t1}, 8, {t0}")
    A(f"s_mov_b32 {sC}, {hex(f32(math.log2(math.e)/math.sqrt(128.0)))}")
    A(f"v_mov_b32 {vMX}, 0xff800000"); A(f"v_mov_b32 {vL0}, 0"); A(f"v_mov_b32 {vL1}, 0")
    A(f"v_and_b32 {t0}, 7, v0"); A(f"v_and_b32 {t1}, 3, {t0}"); A(f"v_lshrrev_b32 {t3}, 2, {t0}"); A(f"v_lshlrev_b32 {t3}, 2, {t3}")
    vFA = vT[10]
    A(f"v_lshl_add_u32 {vFA}, {t1}, 6, {t3}")
    A(f"s_lshr_b32 {sT0}, {sBb}, 2"); A(f"s_lshl_b32 {sT0}, {sT0}, 2"); A(f"s_and_b32 {sT1}, {sHKV}, 3"); A(f"s_add_u32 {sT0}, {sT0}, {sT1}")
    A(f"s_lshr_b32 {sT1}, {sHKV}, 2"); A(f"s_lshl_b32 {sT1}, {sT1}, 1"); A(f"s_lshl_b32 {sT1}, 0x01010101, {sT1}")
    A(f"v_cmp_eq_u32 vcc, {sT0}, {t0}"); A(f"v_mov_b32 {t1}, {sT1}"); A("s_nop 0"); A(f"v_cndmask_b32 {vEXP}, 0, {t1}, vcc")

    def check_loop(load_fn, bad_fn, name):
        lo = g.new(name+"_ok"); lr = g.new(name+"_re")
        bad_fn(); A("s_nop 1"); A(f"s_cbranch_vccz {lo}")
        A(f"s_mov_b32 {sCNT}, 0")
        g.lab(lr)
        A("s_sleep 2")
        load_fn(raw=True); A("s_waitcnt vmcnt(0)")
        A(f"s_add_u32 {sCNT}, {sCNT}, 1"); A(f"s_cmp_gt_u32 {sCNT}, {spin}"); A(f"s_cbranch_scc1 {lo}")
        bad_fn(); A("s_nop 1"); A(f"s_cbranch_vccnz {lr}")
        g.lab(lo)
    def ld(line, tag, raw):
        if raw: A(line)
        else: g.vm(line, tag)
    def load_flags(raw=False): ld(f"buffer_load_dword {vFL}, {vFA}, {sDBG}, 0 offen sc1", "FL", raw)
    def load_flags2(raw=False): ld(f"buffer_load_dword {vFL}, {vFA}, {sDBG}, 0 offen offset:8 sc1", "FL", raw)
    def bad_flags():
        A(f"v_and_b32 {t0}, {vFL}, {vEXP}"); A(f"v_cmp_ne_u32 vcc, {t0}, {vEXP}")
    def load_q(raw=False):
        for s in range(8):
            if s == 4: A(f"s_add_u32 {sT0}, {sQOFF}, 4096")
            ld(f"buffer_load_dwordx4 {vr(QR+4*s,4)}, {vL16}, {sWS}, {sQOFF if s < 4 else sT0} offen offset:{1024*(s%4)} sc1", "Q", raw)
    def bad_regs(base, n):
        def f():
            A(f"v_max3_u32 {t0}, v{base}, v{base+1}, v{base+2}")
            i = 3
            while i+1 < n:
                A(f"v_max3_u32 {t0}, {t0}, v{base+i}, v{base+i+1}"); i += 2
            if i < n: A(f"v_max_u32 {t0}, {t0}, v{base+i}")
            A(f"v_cmp_eq_u32 vcc, -1, {t0}")
        return f
    def qk(hq):
        for s in range(8):
            cc = "0" if s == 0 else vr(SR+16*hq, 16)
            A(f"v_mfma_f32_32x32x16_bf16 {vr(SR+16*hq,16)}, {ar(32*hq+4*s,4)}, {vr(QR+4*s,4)}, {cc}")
    def mx(hq):
        for i in range(8): A(f"v_max3_f32 {vMX}, {vMX}, v{SR+16*hq+2*i}, v{SR+16*hq+2*i+1}")
    def expt(hq):
        b = SR+16*hq
        for r in range(16): A(f"v_fma_f32 v{b+r}, v{b+r}, {sC}, -{vMC}")
        for r in range(16): A(f"v_exp_f32 v{b+r}, v{b+r}")
        for i in range(8):
            A(f"v_add_f32 {vL0}, {vL0}, v{b+2*i}"); A(f"v_add_f32 {vL1}, {vL1}, v{b+2*i+1}")
            A(f"v_cvt_pk_bf16_f32 v{b+i}, v{b+2*i}, v{b+2*i+1}")
    def pwrite(tile):
        l = g.new("pw"); hq = tile >> 1
        A(f"s_cmp_{'ge' if (tile & 1) == 0 else 'lt'}_u32 {sW}, 2"); A(f"s_cbranch_scc1 {l}")
        for u in range(2):
            A(f"ds_write_b128 {vPW}, {vr(SR+16*hq+4*u,4)} offset:{(tile & 1)*4096 + 1024*u}")
        g.lab(l)
    vPW, vPR = vT[11], vT[12]
    A(f"s_and_b32 {sT0}, {sW}, 1"); A(f"s_lshl_b32 {sT0}, {sT0}, 11"); A(f"s_add_u32 {sT0}, {sT0}, {PBUF}")
    A(f"v_add_u32 {vPW}, {sT0}, {vL16}"); A(f"v_add_u32 {vPR}, {PBUF}, {vL16}")

    step_fl = a_flag; step_flc = a_flag + LA - 1; step_qc = step_flc + LA - 1
    assert step_qc <= 14
    qk_done = 0; mx_done = 0
    issued = LA
    for n in range(16):
        g.c(f"---- K step {n}")
        g.wait_vm(("T", n)); A("s_barrier")
        stamp(f"K{n}")
        if n == 0: clears()
        if n == LA: set_flag(8)
        if n == step_fl: load_flags()
        if n == step_flc:
            g.wait_vm("FL"); check_loop(load_flags, bad_flags, "fl"); load_q()
        issue_kv(issued); issued += 1
        l = g.new("kr")
        A(f"s_cmp_{'ge' if (n & 1) == 0 else 'lt'}_u32 {sW}, 2"); A(f"s_cbranch_scc1 {l}")
        A(f"v_add_u32 {t0}, {slot_of(('T', n))*SLOT}, {vKR}")
        for s in range(8):
            if s == 0: A(f"ds_read_b128 {ar(32*(n>>1), 4)}, {t0}")
            else:
                A(f"v_xor_b32 {vT[1+(s&1)]}, {32*s}, {t0}"); A(f"ds_read_b128 {ar(32*(n>>1)+4*s, 4)}, {vT[1+(s&1)]}")
        g.lab(l)
        if n == step_qc:
            g.wait_vm("Q"); check_loop(load_q, bad_regs(QR, 32), "q"); stamp("Qok")
        if n >= step_qc:
            avail = n >> 1 if n < 15 else 7
            k = 0
            while qk_done < avail and (k < qk_per_step or n == 15):
                qk(qk_done); qk_done += 1; k += 1
                if mx_done < qk_done - 1: A("s_nop 3"); mx(mx_done); mx_done += 1
        A("s_waitcnt lgkmcnt(0)")
    qk(7); qk_done = 8
    A("s_nop 3")
    while mx_done < 7: mx(mx_done); mx_done += 1
    A("s_nop 11")
    mx(7)
    vXW, vXR = vT[13], vT[14]
    A(f"v_and_b32 {t0}, 31, v0"); A(f"v_lshlrev_b32 {t0}, 2, {t0}"); A(f"v_add_u32 {vXR}, {MISC}, {t0}")
    A(f"s_lshl_b32 {sT0}, {sW}, 7"); A(f"v_add_u32 {vXW}, {sT0}, {vXR}")
    A(f"v_mov_b32 {t1}, {vMX}"); A("s_nop 1"); A(f"v_permlane32_swap_b32 {vMX}, {t1}"); A(f"v_max_f32 {vMX}, {vMX}, {t1}")
    A(f"ds_write_b32 {vXW}, {vMX}"); A("s_waitcnt lgkmcnt(0)"); A("s_barrier")
    stamp("maxbar")
    issue_kv(issued); issued += 1
    A(f"ds_read2_b32 v[18:19], {vXR} offset0:0 offset1:32"); A(f"ds_read2_b32 v[20:21], {vXR} offset0:64 offset1:96")
    A("s_waitcnt lgkmcnt(0)")
    A(f"v_max3_f32 {vMX}, v18, v19, v20"); A(f"v_max_f32 {vMX}, {vMX}, v21"); A(f"v_mul_f32 {vMC}, {sC}, {vMX}")
    expt(0); pwrite(0); A("s_waitcnt lgkmcnt(0)")
    exp_done = 1
    A(f"s_lshl_b32 {sT0}, {sJ}, 2"); A(f"s_add_u32 {sT0}, {sT0}, {sW}"); A(f"s_mul_i32 {sT0}, {sT0}, {128*1152}")
    A(f"s_add_u32 s16, s40, {sT0}"); A("s_addc_u32 s17, s41, 0"); A(f"s_mov_b32 s18, {128*1152}"); A("s_mov_b32 s19, 0x20000")
    A(f"v_bfe_u32 {t0}, v0, 1, 3"); A(f"v_mul_u32_u24 {t0}, 1152, {t0}")
    A(f"v_lshrrev_b32 {t1}, 4, v0"); A(f"v_lshl_add_u32 {t0}, {t1}, 5, {t0}"); A(f"v_and_b32 {t1}, 1, v0"); A(f"v_lshl_add_u32 {t0}, {t1}, 4, {t0}")
    A(f"s_lshl_b32 {sT0}, {sCB}, 8"); A(f"v_add_u32 {vWO}, {sT0}, {t0}")
    A(f"v_lshrrev_b32 {t0}, 1, v0"); A(f"v_mul_u32_u24 {t0}, 1152, {t0}"); A(f"v_lshl_add_u32 {t0}, {t1}, 4, {t0}")
    A(f"s_lshl_b32 {sT0}, {sCB}, 5"); A(f"s_add_u32 {sT0}, {sT0}, 1024"); A(f"v_add_u32 {vWOX}, {sT0}, {t0}")
    A(f"v_and_b32 {t0}, 15, v0"); A(f"v_lshlrev_b32 {t0}, 3, {t0}")
    A(f"v_bfe_u32 {t1}, v0, 4, 1"); A(f"v_lshl_add_u32 {t0}, {t1}, 7, {t0}")
    A(f"v_lshrrev_b32 {t1}, 5, v0")
    A(f"v_lshl_add_u32 {vWR}, {t1}, 11, {t0}"); A(f"v_lshl_add_u32 {vWRX}, {t1}, 9, {t0}")
    A(f"v_add_u32 {vWR}, {sW4K}, {vWR}"); A(f"v_add_u32 {vWRX}, {sW4K}, {vWRX}")
    def issue_wo(tau, slot):
        for i in range(4):
            A(f"s_add_u32 m0, {sW4K}, {slot*SLOT + 1024*i}")
            if tau < 8:
                A(f"s_mov_b32 {sOFF}, {(32*(tau>>1) + 8*i)*1152 + 128*(tau&1)}")
                g.vm(f"buffer_load_dwordx4 {vWO}, {sA}, {sOFF} offen {wpol} lds", ("WO", tau))
            else:
                A(f"s_mov_b32 {sOFF}, {32*i*1152}")
                g.vm(f"buffer_load_dwordx4 {vWOX}, {sA}, {sOFF} offen {wpol} lds", ("WO", tau))
    def read_wo(tau, slot):
        if tau < 8:
            A(f"v_add_u32 {t0}, {slot*SLOT}, {vWR}")
            for nl in range(4):
                nu = 4*(tau & 1) + nl; d = (nu*4 + (tau >> 1))*4
                for a in range(2): A(f"ds_read_b64_tr_b16 {ar(d+2*a, 2)}, {t0} offset:{1024*a + 256*nl}")
        else:
            A(f"v_add_u32 {t0}, {slot*SLOT}, {vWRX}")
            for ks in range(4):
                d = (8*4 + ks)*4
                for a in range(2): A(f"ds_read_b64_tr_b16 {ar(d+2*a, 2)}, {t0} offset:{1024*ks + 256*a}")
    A(f"s_xor_b32 {sPART}, {sKEY}, 2"); A(f"s_mul_i32 {sPART}, {sPART}, {AREA}"); A(f"s_add_u32 {sPART}, {sPART}, {WS_AREA + A_ML}")
    vMLA = vT[15]
    A(f"v_and_b32 {t0}, 31, v0"); A(f"v_lshlrev_b32 {vMLA}, 3, {t0}")
    def load_ml(raw=False): ld(f"buffer_load_dwordx2 v[46:47], {vMLA}, {sWS}, {sPART} offen sc1", "ML", raw)
    def bad_ml():
        A(f"v_max_u32 {t0}, v46, v47"); A(f"v_cmp_eq_u32 vcc, -1, {t0}")
    vXC = 36
    def load_x(raw=False):
        A(f"s_andn2_b32 {sT0}, {sKEY}, 3"); A(f"s_lshl_b32 {sT0}, {sT0}, 2"); A(f"s_add_u32 {sT0}, {sT0}, {WS_XCC}")
        ld(f"buffer_load_dwordx4 v[{vXC}:{vXC+3}], {vZ}, {sWS}, {sT0} offen sc1", "XC", raw)

    st_lw = 4
    st_fl2 = 1; st_fl2c = st_fl2 + LA - 1
    st_mll = 16 - 2*1 - (LA - 1) - 1
    st_mlc = st_mll + LA - 1
    wo_slot = {t: slot_of(("WO", t)) for t in range(9)}
    for t in range(16):
        n = 16 + t
        g.c(f"---- V step {t}")
        g.wait_vm(("T", n))
        A("s_barrier")
        stamp(f"V{t}")
        if t == st_fl2:
            A(f"v_mov_b32 {vEXP}, -1"); load_flags2()
        if t == st_fl2c:
            g.wait_vm("FL"); check_loop(load_flags2, bad_flags, "fl2"); load_x()
        if t == st_lw + 1:
            A(f"ds_read2_b32 v[18:19], {vXR} offset0:128 offset1:160"); A(f"ds_read2_b32 v[20:21], {vXR} offset0:192 offset1:224")
            A("s_waitcnt lgkmcnt(0)")
            A(f"v_add_f32 v18, v18, v19"); A(f"v_add_f32 v20, v20, v21"); A(f"v_add_f32 v45, v18, v20"); A(f"v_min_u32 v44, -2, {vMC}"); A("v_min_u32 v45, -2, v45")
            A(f"s_add_u32 {sT0}, {sAREA}, {A_ML}")
            g.vm(f"buffer_store_dwordx2 v[44:45], {vMLA}, {sWS}, {sT0} offen sc1", "MLS")
        if t == st_mll: load_ml()
        free_upto = rpos[("T", n-1)]
        lim = rpos[("T", n)] + LA
        if t == 15: lim = -1
        while issued < len(ring) and issued <= lim and issued - NSLOT <= free_upto:
            e = ring[issued]; issued += 1
            if e[0] == "T": issue_kv(e[1])
            else: issue_wo(e[1], slot_of(e))
        A(f"v_add_u32 {t0}, {slot_of(('T', n))*SLOT}, {vVR}")
        for u in range(4):
            A(f"ds_read_b128 {vr(FR+8*u+4,4)}, {vPR} offset:{(t & 1)*4096 + 1024*u}")
            for a in range(2): A(f"ds_read_b64_tr_b16 {vr(FR+8*u+2*a,2)}, {t0} offset:{4096*u + 2048*a}")
        for u in range(4):
            A(f"s_waitcnt lgkmcnt({3*(3-u)})")
            cc = "0" if (t == 0 and u == 0) else vr(OACC, 16)
            A(f"v_mfma_f32_32x32x16_bf16 {vr(OACC,16)}, {vr(FR+8*u,4)}, {vr(FR+8*u+4,4)}, {cc}")
        for k, te in enumerate(early):
            if t == te: read_wo(k, wo_slot[k])
        k = 0
        while exp_done < 8 and k < 2: expt(exp_done); exp_done += 1; k += 1
        if t < 15: pwrite(t + 1)
        if t == st_lw:
            assert exp_done == 8
            A(f"v_add_f32 {vL0}, {vL0}, {vL1}"); A(f"v_mov_b32 {vL1}, {vL0}"); A("s_nop 1"); A(f"v_permlane32_swap_b32 {vL0}, {vL1}")
            A(f"v_add_f32 {vL0}, {vL0}, {vL1}"); A(f"ds_write_b32 {vXW}, {vL0} offset:512")
        if t == st_fl2c + LA - 1:
            g.wait_vm("XC")
            A(f"v_xor_b32 v{vXC}, {sSAME}, v{vXC}"); A(f"v_xor_b32 v{vXC+1}, {sSAME}, v{vXC+1}"); A(f"v_xor_b32 v{vXC+2}, {sSAME}, v{vXC+2}"); A(f"v_xor_b32 v{vXC+3}, {sSAME}, v{vXC+3}")
            A(f"v_or3_b32 v{vXC}, v{vXC}, v{vXC+1}, v{vXC+2}"); A(f"v_or_b32 v{vXC}, v{vXC}, v{vXC+3}"); A("s_nop 0")
            A(f"v_readfirstlane_b32 {sSAME}, v{vXC}")
        if t == st_mlc:
            g.wait_vm("ML"); check_loop(load_ml, bad_ml, "ml")
            A(f"v_max_f32 {t1}, v44, v46"); A(f"v_sub_f32 {t2}, v44, {t1}"); A(f"v_sub_f32 {t3}, v46, {t1}")
            A(f"v_exp_f32 {t2}, {t2}"); A(f"v_exp_f32 {t3}, {t3}"); A("s_nop 0")
            A(f"v_mul_f32 {t1}, {t2}, v45"); A(f"v_fma_f32 {t1}, {t3}, v47, {t1}"); A(f"v_rcp_f32 {t1}, {t1}"); A("s_nop 0")
            A(f"v_mul_f32 {vSC}, {t2}, {t1}")
        if t < 15: A("s_waitcnt lgkmcnt(0)")
    vOS, vOL = vT[16], vT[17]
    A(f"s_lshl_b32 {sT0}, {sW}, 11"); A(f"s_add_u32 {sT0}, {sT0}, {sAREA}")
    A(f"v_and_b32 {t0}, 15, v0"); A(f"v_bfe_u32 {t1}, v0, 4, 1"); A(f"v_lshl_add_u32 {t0}, {t1}, 5, {t0}"); A(f"v_lshlrev_b32 {t0}, 4, {t0}")
    A(f"v_lshrrev_b32 {t1}, 5, v0"); A(f"v_lshl_add_u32 {t0}, {t1}, 10, {t0}")
    A(f"s_and_b32 {sT1}, {sW}, 1"); A(f"s_lshl_b32 {sT1}, {sT1}, 8"); A(f"v_add_u32 {vOL}, {sT1}, {t0}")
    A(f"s_andn2_b32 {sT1}, {sKEY}, 3"); A(f"s_lshr_b32 {sT2}, {sW}, 1"); A(f"s_add_u32 {sT1}, {sT1}, {sT2}")
    A(f"s_mul_i32 {sT1}, {sT1}, {AREA}"); A(f"s_add_u32 {sQS1}, {sT1}, {WS_AREA}"); A(f"s_add_u32 {sQS2}, {sQS1}, {2*AREA}")
    for r in range(16): A(f"v_mul_f32 v{OACC+r}, v{OACC+r}, {vSC}")
    for i in range(8): A(f"v_cvt_pk_bf16_f32 v{FR+i}, v{OACC+2*i}, v{OACC+2*i+1}")
    for i in range(8): A(f"v_min_u32 v{FR+i}, -2, v{FR+i}")
    l1 = g.new("os"); l2 = g.new("os")
    A(f"s_cmp_eq_u32 {sSAME}, 0"); A(f"s_cbranch_scc1 {l1}")
    for u in range(2): A(f"buffer_store_dwordx4 {vr(FR+4*u,4)}, {vL16}, {sWS}, {sT0} offen offset:{1024*u} sc1")
    A(f"s_branch {l2}")
    g.lab(l1)
    for u in range(2): g.vm(f"buffer_store_dwordx4 {vr(FR+4*u,4)}, {vL16}, {sWS}, {sT0} offen offset:{1024*u}", "OST")
    g.lab(l2)
    stamp("Opub")
    while issued < len(ring):
        assert issued - NSLOT <= rpos[("T", 30)]
        e = ring[issued]; issued += 1; issue_wo(e[1], slot_of(e))
    def load_o(raw=False):
        for s in range(2):
            for ks in range(4):
                if ks == 2: A(f"s_add_u32 {sT1}, {sQS1 if s == 0 else sQS2}, 4096")
                so = (sQS1 if s == 0 else sQS2) if ks < 2 else sT1
                ld(f"buffer_load_dwordx4 {vr(QR+16*s+4*ks,4)}, {vOL}, {sWS}, {so} offen offset:{2048*(ks%2)} sc1", "O", raw)
    load_o()
    for tau in range(len(early), 9):
        g.wait_vm(("WO", tau)); read_wo(tau, wo_slot[tau])
    g.wait_vm("O"); check_loop(load_o, bad_regs(QR, 32), "o")
    stamp("Ook")
    A("s_waitcnt lgkmcnt(0)")
    Y = SR
    vYW, vYR = vT[18], vT[19]
    A(f"v_add_u32 {vYW}, {sW4K}, {vL16}")
    ysl = [wo_slot[6], wo_slot[7], wo_slot[8]]
    def yaddr(nu): return ysl[nu >> 2]*SLOT + (nu & 3)*1024
    pend = None
    for nu in range(9):
        for s in range(2):
            for ks in range(4):
                cc = "0" if (s == 0 and ks == 0) else vr(Y+4*nu, 4)
                A(f"v_mfma_f32_16x16x32_bf16 {vr(Y+4*nu,4)}, {ar((nu*4+ks)*4,4)}, {vr(QR+16*s+4*ks,4)}, {cc}")
        if nu > 0:
            A(f"v_add_u32 {t0}, {yaddr(nu-1) & ~0xffff if False else ysl[(nu-1) >> 2]*SLOT}, {vYW}")
            A(f"ds_write_b128 {t0}, {vr(Y+4*(nu-1),4)} offset:{((nu-1) & 3)*1024}")
    A(f"v_add_u32 {t0}, {ysl[2]*SLOT}, {vYW}"); A("s_nop 6")
    A(f"ds_write_b128 {t0}, {vr(Y+32,4)}")
    A(f"s_lshr_b32 {sT0}, {sW}, 1"); A(f"s_cmp_eq_u32 {sT0}, 0"); csel(sT0, ysl[0]*SLOT, ysl[1]*SLOT)
    A(f"s_and_b32 {sT1}, {sW}, 1"); A(f"s_lshl_b32 {sT1}, {sT1}, 11"); A(f"s_add_u32 {sT0}, {sT0}, {sT1}")
    A(f"v_add_u32 {vYR}, {sT0}, {vL16}")
    vYS = vT[20]
    A(f"v_bfe_u32 {t1}, v0, 1, 3"); A(f"v_mul_u32_u24 {t1}, 1152, {t1}"); A(f"v_and_b32 {t2}, 1, v0"); A(f"v_lshl_add_u32 {t1}, {t2}, 6, {t1}")
    A(f"v_lshrrev_b32 {t2}, 4, v0"); A(f"v_lshl_add_u32 {vYS}, {t2}, 4, {t1}")
    A(f"s_lshl_b32 {sT2}, {sW}, 8"); A(f"s_add_u32 {sT2}, {sT2}, {sAREA}"); A(f"s_add_u32 {sT2}, {sT2}, {A_Y}")
    A("s_waitcnt lgkmcnt(0)"); A("s_barrier")
    R = SR + 40
    for k in range(2):
        for w in range(4): A(f"ds_read_b128 {vr(R+16*k+4*w,4)}, {vYR} offset:{4096*w + 1024*k}")
    def sum4(base):
        for i in range(4): A(f"v_add_f32 v{base+i}, v{base+i}, v{base+4+i}")
        for i in range(4): A(f"v_add_f32 v{base+8+i}, v{base+8+i}, v{base+12+i}")
        for i in range(4): A(f"v_add_f32 v{base+i}, v{base+i}, v{base+8+i}")
        for i in range(4): A(f"v_min_u32 v{base+i}, -2, v{base+i}")
    for k in range(2):
        A(f"s_waitcnt lgkmcnt({4*(1-k)})"); sum4(R+16*k)
        A(f"buffer_store_dwordx4 {vr(R+16*k,4)}, {vYS}, {sWS}, {sT2} offen offset:{128*k} sc1")
    stamp("Ypub")
    A(f"s_cmp_ge_u32 {sW}, 2"); A("s_cbranch_scc1 L_fin")
    l = g.new("t8")
    A(f"s_cmp_eq_u32 {sW}, 0"); A(f"s_cbranch_scc1 {l}")
    A(f"v_add_u32 {t0}, {ysl[2]*SLOT}, {vL16}")
    for w in range(4): A(f"ds_read_b128 {vr(R+32+4*w,4)}, {t0} offset:{4096*w}")
    A(f"s_add_u32 {sT2}, {sAREA}, {A_Y + 1024}")
    A("s_waitcnt lgkmcnt(0)"); sum4(R+32)
    A(f"buffer_store_dwordx4 {vr(R+32,4)}, {vYS}, {sWS}, {sT2} offen sc1")
    g.lab(l)
    vT2 = vT[21]
    A(f"v_and_b32 {t0}, 7, v0"); A(f"v_add_u32 {t0}, 64, {t0}"); A(f"s_cmp_eq_u32 {sW}, 0"); A("s_cselect_b64 vcc, -1, 0"); A("s_nop 0")
    A(f"v_cndmask_b32 {vT2}, {t0}, v0, vcc")
    A(f"v_lshlrev_b32 {t1}, 4, {vT2}")
    A(f"s_mul_i32 {sT0}, {sR}, {AREA}"); A(f"s_mul_i32 {sT1}, {sJ}, 1152"); A(f"s_add_u32 {sT0}, {sT0}, {sT1}"); A(f"s_add_u32 {sQS1}, {sT0}, {WS_AREA + A_Y}")
    H = QR
    def load_y(raw=True):
        A(f"s_mov_b32 {sT0}, {sQS1}")
        for j in range(8):
            A(f"buffer_load_dwordx4 {vr(H+4*j,4)}, {t1}, {sWS}, {sT0} offen sc1")
            if j < 7: A(f"s_add_u32 {sT0}, {sT0}, {32*AREA}")
    load_y()
    A(f"s_add_u32 s20, s42, 0"); A("s_addc_u32 s21, s43, 0"); A(f"s_mov_b32 s22, {128*1152}"); A("s_mov_b32 s23, 0x20000")
    A(f"s_lshl_b32 {sT2}, {sBb}, 4"); A(f"s_lshl_b32 {sT3}, {sJ}, 1"); A(f"s_add_u32 {sT2}, {sT2}, {sT3}"); A(f"s_mul_i32 {sT2}, {sT2}, 1152")
    A(f"s_lshl_b32 {sT3}, {sCB}, 8"); A(f"s_lshl_b32 {sOFF}, {sCB}, 5"); A(f"s_add_u32 {sOFF}, {sOFF}, {1024 - 256}")
    A(f"s_cmp_eq_u32 {sW}, 0"); A(f"s_cselect_b32 {sT3}, {sT3}, {sOFF}"); A(f"s_add_u32 {sT2}, {sT2}, {sT3}")
    A(f"v_bfe_u32 {t2}, {vT2}, 2, 1"); A(f"v_mul_u32_u24 {t2}, 1152, {t2}")
    A(f"v_lshrrev_b32 {t3}, 3, {vT2}"); A(f"v_lshl_add_u32 {t2}, {t3}, 5, {t2}"); A(f"v_and_b32 {t3}, 3, {vT2}"); A(f"v_lshl_add_u32 {t2}, {t3}, 3, {t2}")
    A("s_waitcnt vmcnt(0)")
    check_loop(load_y, bad_regs(H, 32), "y")
    for st in (4, 8, 16):
        for base in range(H, H+32, 2*st if st < 16 else 32):
            for i in range(4): A(f"v_add_f32 v{base+i}, v{base+i}, v{base+st+i}")
    A(f"v_cvt_pk_bf16_f32 v{H}, v{H}, v{H+1}"); A(f"v_cvt_pk_bf16_f32 v{H+1}, v{H+2}, v{H+3}")
    A(f"buffer_store_dwordx2 {vr(H,2)}, {t2}, {sB}, {sT2} offen {outpol}")
    g.lab("L_fin")
    if prof:
        if True:
            i = nstamp[0]
        A("s_waitcnt vmcnt(0)")
        stamp("end")
        ns = nstamp[0]
        A(f"s_lshl_b32 {sT0}, s2, 2"); A(f"s_add_u32 {sT0}, {sT0}, {sW}"); A(f"s_mul_i32 {sT0}, {sT0}, {8*ns}"); A(f"s_add_u32 {sT0}, {sT0}, {STAMP_OFF}")
        A(f"s_add_u32 s46, s46, {sT0}"); A("s_addc_u32 s47, s47, 0")
        A("v_mov_b32 v1, 0"); A("s_mov_b64 exec, 1")
        for j in range(ns):
            A(f"v_mov_b32 v2, s{ST0+2*j}"); A(f"v_mov_b32 v3, s{ST0+2*j+1}")
            A(f"global_store_dwordx2 v1, v[2:3], s[46:47] offset:{8*j}"); A("s_waitcnt vmcnt(0)")
        sys.stderr.write(f"nstamps={ns} start " + " ".join(names) + "\n")
    g.lab("L_end"); g.L.append("s_endpgm")
    g.L += ['.section .rodata,"a"', ".p2align 6", f".amdhsa_kernel {KN}",
            "  .amdhsa_next_free_vgpr 512", "  .amdhsa_next_free_sgpr 102", "  .amdhsa_accum_offset 256",
            "  .amdhsa_group_segment_fixed_size 0", "  .amdhsa_kernarg_size 64", "  .amdhsa_user_sgpr_count 2",
            "  .amdhsa_user_sgpr_kernarg_segment_ptr 1", "  .amdhsa_system_sgpr_workgroup_id_x 1",
            "  .amdhsa_float_denorm_mode_32 3", "  .amdhsa_float_denorm_mode_16_64 3", ".end_amdhsa_kernel"]
    return "\n".join(g.L) + "\n"

if __name__ == "__main__":
    import argparse, ast
    ap = argparse.ArgumentParser(); ap.add_argument("out"); ap.add_argument("kw", nargs="*")
    a = ap.parse_args()
    kw = {}
    for e in a.kw:
        k, v = e.split("=", 1)
        try: kw[k] = ast.literal_eval(v)
        except Exception: kw[k] = v
    if "stamps" in kw: kw["stamps"] = kw["stamps"].split(","); kw["prof"] = True
    open(a.out, "w").write(gen(**kw))
```

```python
import sys, math, struct
from gen import G, f32, HEADER, KN

SLOT = 16384
NSLOT = 9
PBUF = NSLOT*SLOT
MISC = PBUF + 8192
LDS_BYTES = 163840
WS_Q = 0
WS_CTRL = 0x200000
WS_TAB = 0x200100
WS_AREA = 0x210000
AREA = 26624
A_O, A_Y, A_ML = 0, 16384, 16384 + 9216
WS_SIZE = 0x900000
STAMP_OFF = 512 << 20

def gen(LA=5, prof=False, kvpol="nt", wpol="nt", outpol="", spin=65536, qk_per_step=2, early=(8,), stamps=None,
        head="QQQQQQQQQ", q_ld=3, rot=0, forcesc1=False, exp_per_step=2, ml_ld=9, tab_ld=2, la_v=None, xpol=None, qstpol="sc1", skip="", wsbase=0):
    g = G(); g.paths = ["N"]; A = g
    sW = "s3"
    sK, sV, sWS, sA, sB = "s[4:7]", "s[8:11]", "s[12:15]", "s[16:19]", "s[20:23]"
    sJ, sR, sBb, sHKV, sCB, sKEY = "s28", "s29", "s30", "s31", "s48", "s49"
    sW4K, sOFF, sT0, sT1, sT2, sT3 = "s50", "s51", "s52", "s53", "s54", "s55"
    sC, sAREA, sSAME, sCNT, sQS1, sQS2 = "s56", "s57", "s58", "s59", "s60", "s61"
    sPART, sQOFF, sN, sKB, sXCC = "s62", "s63", "s24", "s25", "s26"
    ST0 = 64
    nstamp = [0]; names = []
    def stamp(name):
        if not prof: return
        if stamps is not None and name not in stamps: return
        names.append(name)
        i = nstamp[0]; nstamp[0] += 1
        assert ST0+2*i+1 <= 101
        A(f"s_memrealtime s[{ST0+2*i}:{ST0+2*i+1}]"); A("s_waitcnt lgkmcnt(0)")
    vK = ["v1", "v2", "v3", "v4"]; vV = "v5"; vKR = "v6"; vVR = "v7"; vL16 = "v8"
    vMX, vMC, vL0, vL1, vSC, vN, vZ = "v9", "v10", "v11", "v12", "v13", "v14", "v16"
    t0, t1, t2, t3 = "v17", "v18", "v19", "v20"
    vQA, vQB, vDW, vDX, vQST = "v22", "v23", "v24", "v25", "v26"
    vPW, vPR, vXW, vXR, vMLA, vOL, vYW, vYR, vYS, vT2 = [f"v{i}" for i in range(27, 37)]
    vWO, vWOX, vWR, vWRX = "v37", "v38", "v39", "v15"
    ML0, ML1 = 40, 44
    FR, OACC, QR, SR = 48, 80, 96, 128
    def vr(a, n): return f"v[{a}:{a+n-1}]"
    def ar(a, n): return f"a[{a}:{a+n-1}]"
    def csel(dst, a, b):
        A(f"s_mov_b32 {dst}, {b}"); A(f"s_cselect_b32 {dst}, {a}, {dst}")

    ring = []; nq = 0; nk = 0
    for ch in head:
        if ch == "Q": ring.append(("QP", nq)); nq += 1
        else: ring.append(("T", nk)); nk += 1
    assert nq == 9
    for n in range(nk, 32):
        for k, t in enumerate(early):
            if n == 16 + t: ring.append(("WO", k))
        ring.append(("T", n))
    ring += [("WO", t) for t in range(len(early), 9)]
    rpos = {e: i for i, e in enumerate(ring)}
    def slot_of(e): return rpos[e] % NSLOT

    g.L.append(HEADER + f"; @launch grid=(256,1,1) block=(256,1,1) lds={LDS_BYTES}")
    g.L.append('.amdgcn_target "amdgcn-amd-amdhsa--gfx950"')
    g.L.append(".text"); g.L.append(f".globl {KN}"); g.L.append(".p2align 8"); g.L.append(f".type {KN},@function"); g.lab(KN)
    A("s_cmp_ge_u32 s2, 256"); A("s_cbranch_scc1 L_end")
    A("s_load_dwordx16 s[32:47], s[0:1], 0")
    if prof: A(f"s_memrealtime s[{ST0}:{ST0+1}]"); nstamp[0] = 1
    A("v_lshrrev_b32 v1, 6, v0")
    A(f"s_and_b32 {sJ}, s2, 7"); A(f"s_lshr_b32 {sR}, s2, 3")
    A(f"v_readfirstlane_b32 {sW}, v1")
    A("v_and_b32 v0, 63, v0")
    A(f"s_lshr_b32 {sBb}, {sR}, 2"); A(f"s_and_b32 {sCB}, {sR}, 3")
    A(f"s_and_b32 {sT0}, {sR}, 1"); A(f"s_lshl_b32 {sHKV}, {sJ}, 1"); A(f"s_or_b32 {sHKV}, {sHKV}, {sT0}")
    A(f"s_lshl_b32 {sKEY}, {sJ}, 5"); A(f"s_or_b32 {sKEY}, {sKEY}, {sR}")
    A(f"s_lshl_b32 {sW4K}, {sW}, 12")
    A(f"s_lshl_b32 {sT2}, {sJ}, 3"); A(f"s_and_b32 {sT3}, {sR}, 7"); A(f"s_or_b32 {sT2}, {sT2}, {sT3}"); A(f"s_lshl_b32 {sT2}, {sT2}, 7")
    A(f"s_lshl_b32 {sT3}, {sW}, 17"); A(f"s_add_u32 {sQS1}, {sT2}, {sT3}")
    A(f"s_lshr_b32 {sT2}, {sR}, 3"); A(f"s_lshl_b32 {sT2}, {sT2}, 2"); A(f"s_add_u32 {sT2}, {sT2}, {sW}"); A(f"s_mul_i32 {sQS2}, {sT2}, {8*1152}")
    A(f"v_lshrrev_b32 {t0}, 3, v0"); A(f"v_and_b32 {t1}, 7, v0")
    A(f"v_bfe_u32 {t2}, v0, 4, 1"); A(f"v_lshlrev_b32 {t2}, 2, {t2}"); A(f"v_xor_b32 {t2}, {t2}, {t1}"); A(f"v_lshlrev_b32 {t2}, 4, {t2}")
    A(f"v_lshl_add_u32 {vDW}, {t0}, 13, {t2}")
    A(f"s_lshl_b32 {sT2}, {sW}, 2"); A(f"s_and_b32 {sT2}, {sT2}, 4")
    A(f"v_lshrrev_b32 {t2}, 4, v0"); A(f"v_add_u32 {t2}, {sT2}, {t2}"); A(f"v_xor_b32 {t2}, {t2}, {t1}"); A(f"v_lshlrev_b32 {t2}, 4, {t2}")
    A(f"v_mul_u32_u24 {t0}, 1152, {t0}"); A(f"v_add_u32 {vDX}, {t0}, {t2}")
    if rot:
        A(f"s_lshr_b32 {sKB}, {sR}, 3"); A(f"s_mul_i32 {sKB}, {sKB}, {rot}")
    else:
        A(f"s_mov_b32 {sKB}, 0")
    A(f"s_lshl_b32 {sT0}, {sBb}, 4"); A(f"s_or_b32 {sT0}, {sT0}, {sHKV}")
    A(f"s_lshl_b32 {sQOFF}, {sT0}, 14"); A(f"s_add_u32 {sQOFF}, {sQOFF}, {sW4K}")
    A(f"s_lshl_b32 {sT0}, {sT0}, 21")
    A(f"s_lshr_b32 {sT1}, {sR}, 1"); A(f"s_and_b32 {sT1}, {sT1}, 1"); A(f"s_lshl_b32 {sT1}, {sT1}, 18")
    A(f"s_add_u32 {sT0}, {sT0}, {sT1}"); A(f"s_add_u32 {sT0}, {sT0}, {6144*256}"); A(f"s_add_u32 {sT0}, {sT0}, {sW4K}")
    A(f"v_lshrrev_b32 {t0}, 4, v0"); A(f"v_and_b32 {t1}, 15, v0"); A(f"v_lshlrev_b32 {t2}, 8, {t0}")
    for i in range(4):
        A(f"v_add_u32 {t3}, {4*i}, {t0}"); A(f"v_xor_b32 {t3}, {t3}, {t1}"); A(f"v_lshl_add_u32 {vK[i]}, {t3}, 4, {t2}")
    A(f"v_lshlrev_b32 {t3}, 2, {t0}"); A(f"v_xor_b32 {t3}, {t3}, {t1}"); A(f"v_lshl_add_u32 {vV}, {t3}, 4, {t2}")
    A("s_waitcnt lgkmcnt(0)")
    if wsbase: A(f"s_add_u32 s44, s46, {wsbase}"); A("s_addc_u32 s45, s47, 0")
    else: A("s_mov_b32 s44, s46"); A("s_mov_b32 s45, s47")
    A(f"s_add_u32 s16, s38, {sQS1}"); A("s_addc_u32 s17, s39, 0"); A(f"s_sub_u32 s18, {576*8192}, {sQS1}"); A("s_mov_b32 s19, 0x20000")
    A(f"s_add_u32 s20, s32, {sQS2}"); A("s_addc_u32 s21, s33, 0"); A(f"s_sub_u32 s22, {128*1152}, {sQS2}"); A("s_mov_b32 s23, 0x20000")
    A(f"s_add_u32 s4, s34, {sT0}"); A("s_addc_u32 s5, s35, 0"); A(f"s_sub_u32 s6, 262144, {sW4K}"); A("s_mov_b32 s7, 0x20000")
    A(f"s_add_u32 s8, s36, {sT0}"); A("s_addc_u32 s9, s37, 0"); A("s_mov_b32 s10, s6"); A("s_mov_b32 s11, 0x20000")
    A(f"s_lshl_b32 {sQS1}, {sW}, 11")
    A(f"s_lshl_b32 {sQS2}, {sW}, 10"); A(f"s_add_u32 {sQS2}, {sQS2}, 8192")

    def issue(e):
        sl = slot_of(e)*SLOT; kind, n = e
        if kind == "T":
            A(f"s_add_u32 m0, {sW4K}, {sl}")
            A(f"s_mov_b32 {sOFF}, {(n % 16)*SLOT}")
            for i in range(4):
                if n < 16: g.vm(f"buffer_load_dwordx4 {vV if 'kswz' in skip else vK[i]}, {sK}, {sOFF} offen offset:{1024*i} {kvpol} lds", e)
                else:      g.vm(f"buffer_load_dwordx4 {vV}, {sV}, {sOFF} offen offset:{1024*i} {kvpol} lds", e)
        elif kind == "QP":
            A(f"s_add_u32 m0, {sQS1}, {sl}")
            A(f"s_lshl_b32 {sOFF}, {sKB}, 19")
            if 'nowq' not in skip: g.vm(f"buffer_load_dwordx4 {vDW}, {sA}, {sOFF} offen {wpol} lds", e)
            A(f"s_add_u32 m0, {sQS1}, {sl + 1024}")
            A(f"s_add_u32 {sOFF}, {sOFF}, {8*8192}")
            if 'nowq' not in skip: g.vm(f"buffer_load_dwordx4 {vDW}, {sA}, {sOFF} offen {wpol} lds", e)
            A(f"s_add_u32 m0, {sQS2}, {sl}")
            A(f"s_lshl_b32 {sOFF}, {sKB}, 7")
            if 'nox' not in skip: g.vm(f"buffer_load_dwordx4 {vDX}, {sB}, {sOFF} offen {wpol if xpol is None else xpol} lds", e)
            if n < 8:
                A(f"s_add_u32 {sKB}, {sKB}, 1")
                if rot: A(f"s_cmp_eq_u32 {sKB}, 9"); A(f"s_cselect_b32 {sKB}, 0, {sKB}")
        else:
            for i in range(4):
                A(f"s_add_u32 m0, {sW4K}, {sl + 1024*i}")
                if n < 8:
                    A(f"s_mov_b32 {sOFF}, {(32*(n>>1) + 8*i)*1152 + 128*(n&1)}")
                    g.vm(f"buffer_load_dwordx4 {vWO}, {sA}, {sOFF} offen {wpol} lds", e)
                else:
                    A(f"s_mov_b32 {sOFF}, {32*i*1152}")
                    g.vm(f"buffer_load_dwordx4 {vWOX}, {sA}, {sOFF} offen {wpol} lds", e)
    issued = [0]
    def issue_upto(lim, free_upto):
        while issued[0] < len(ring) and issued[0] <= lim and issued[0] - NSLOT <= free_upto:
            issue(ring[issued[0]]); issued[0] += 1
    issue_upto(LA - 1, -1 + 0*NSLOT + NSLOT)
    stamp("issued")
    A(f"s_add_u32 s12, s44, {WS_CTRL}"); A("s_addc_u32 s13, s45, 0")
    A(f"s_load_dword {sN}, s[12:13], 0")
    A(f"s_getreg_b32 {sXCC}, hwreg(HW_REG_XCC_ID)"); A(f"s_and_b32 {sXCC}, {sXCC}, 15")
    A(f"s_mul_i32 {sAREA}, {sKEY}, {AREA}"); A(f"s_add_u32 {sAREA}, {sAREA}, {WS_AREA}")
    A(f"v_lshlrev_b32 {vL16}, 4, v0"); A(f"v_mov_b32 {vZ}, 0")
    A(f"v_bfe_u32 {t3}, v0, 4, 1"); A(f"v_lshlrev_b32 {t3}, 1, {t3}"); A(f"v_and_b32 {t1}, 1, v0"); A(f"v_add_u32 {t3}, {t3}, {t1}")
    A(f"s_and_b32 {sT0}, {sW}, 1"); A(f"s_lshl_b32 {sT1}, {sT0}, 2"); A(f"v_add_u32 {t3}, {sT1}, {t3}")
    A(f"v_bfe_u32 {t1}, v0, 3, 1"); A(f"v_lshlrev_b32 {t1}, 2, {t1}"); A(f"v_xor_b32 {t3}, {t3}, {t1}"); A(f"v_lshlrev_b32 {t3}, 4, {t3}")
    A(f"v_bfe_u32 {t1}, v0, 1, 1"); A(f"v_lshl_add_u32 {t3}, {t1}, 3, {t3}")
    A(f"v_bfe_u32 {t2}, v0, 2, 2"); A(f"v_lshrrev_b32 {t0}, 5, v0"); A(f"v_lshl_add_u32 {t2}, {t0}, 3, {t2}")
    A(f"v_lshl_add_u32 {t2}, {t2}, 7, {t3}")
    A(f"s_lshr_b32 {sT1}, {sW}, 1"); A(f"s_lshl_b32 {sT2}, {sT1}, 12"); A(f"v_add_u32 {vQA}, {sT2}, {t2}")
    A(f"v_bfe_u32 {t1}, v0, 1, 3"); A(f"v_xor_b32 {t1}, {t1}, {t0}"); A(f"s_lshl_b32 {sT2}, {sT1}, 2"); A(f"v_xor_b32 {t1}, {sT2}, {t1}")
    A(f"v_lshlrev_b32 {t1}, 4, {t1}"); A(f"v_and_b32 {t2}, 31, v0"); A(f"v_lshl_add_u32 {t1}, {t2}, 7, {t1}"); A(f"v_add_u32 {vQB}, 8192, {t1}")
    A(f"s_lshr_b32 {sT2}, {sR}, 3"); A(f"s_lshl_b32 {sT2}, {sT2}, 5"); A(f"s_lshl_b32 {sT3}, {sJ}, 1"); A(f"s_add_u32 {sT2}, {sT2}, {sT3}")
    A(f"s_bfe_u32 {sT3}, {sR}, 0x10002"); A(f"s_add_u32 {sT2}, {sT2}, {sT3}"); A(f"s_lshl_b32 {sT2}, {sT2}, 3")
    A(f"s_and_b32 {sT3}, {sR}, 1"); A(f"s_lshl_b32 {sT3}, {sT3}, 2"); A(f"s_add_u32 {sT2}, {sT2}, {sT3}")
    A(f"s_lshl_b32 {sT3}, {sT0}, 1"); A(f"s_add_u32 {sT2}, {sT2}, {sT3}"); A(f"s_add_u32 {sT2}, {sT2}, {sT1}"); A(f"s_lshl_b32 {sT2}, {sT2}, 11")
    A(f"s_and_b32 {sT3}, {sR}, 2"); A(f"s_lshl_b32 {sT3}, {sT3}, 7"); A(f"s_add_u32 {sT2}, {sT2}, {sT3}")
    A(f"v_bfe_u32 {t1}, v0, 4, 1"); A(f"v_lshlrev_b32 {t1}, 18, {t1}"); A(f"v_lshl_add_u32 {t1}, {t0}, 9, {t1}")
    A(f"v_and_b32 {t2}, 15, v0"); A(f"v_lshl_add_u32 {t1}, {t2}, 4, {t1}"); A(f"v_add_u32 {vQST}, {sT2}, {t1}")
    A(f"v_xor_b32 {t1}, {t2}, {t0}"); A(f"v_lshlrev_b32 {t1}, 4, {t1}"); A(f"v_and_b32 {t2}, 31, v0"); A(f"v_lshl_add_u32 {t1}, {t2}, 8, {t1}")
    A(f"s_lshl_b32 {sT2}, {sT0}, 13"); A(f"v_add_u32 {vKR}, {sT2}, {t1}")
    A(f"v_lshlrev_b32 {vMLA}, 4, {t2}")
    A(f"v_lshlrev_b32 {t2}, 2, {t2}"); A(f"v_add_u32 {vXR}, {MISC}, {t2}"); A(f"s_lshl_b32 {sT2}, {sW}, 7"); A(f"v_add_u32 {vXW}, {sT2}, {vXR}")
    A(f"v_bfe_u32 {t2}, v0, 4, 1"); A(f"v_lshlrev_b32 {t2}, 1, {t2}"); A(f"v_bfe_u32 {t1}, v0, 1, 1"); A(f"v_add_u32 {t2}, {t2}, {t1}")
    A(f"s_lshl_b32 {sT2}, {sW}, 2"); A(f"v_add_u32 {t2}, {sT2}, {t2}")
    A(f"v_bfe_u32 {t1}, v0, 2, 2"); A(f"v_lshlrev_b32 {t3}, 2, {t1}"); A(f"v_xor_b32 {t2}, {t2}, {t3}"); A(f"v_lshlrev_b32 {t2}, 4, {t2}")
    A(f"v_and_b32 {t3}, 1, v0"); A(f"v_lshl_add_u32 {t2}, {t3}, 3, {t2}")
    A(f"v_lshl_add_u32 {t1}, {t0}, 2, {t1}"); A(f"v_lshl_add_u32 {vVR}, {t1}, 8, {t2}")
    A(f"s_lshl_b32 {sT2}, {sT0}, 11"); A(f"s_add_u32 {sT2}, {sT2}, {PBUF}"); A(f"v_add_u32 {vPW}, {sT2}, {vL16}"); A(f"v_add_u32 {vPR}, {PBUF}, {vL16}")
    A(f"s_mov_b32 {sC}, {hex(f32(math.log2(math.e)/math.sqrt(128.0)))}")
    A(f"v_mov_b32 {vMX}, 0xff800000"); A(f"v_mov_b32 {vL0}, 0"); A(f"v_mov_b32 {vL1}, 0")
    A(f"v_bfe_u32 {t1}, v0, 1, 3"); A(f"v_mul_u32_u24 {t1}, 1152, {t1}")
    A(f"v_lshrrev_b32 {t2}, 4, v0"); A(f"v_lshl_add_u32 {t1}, {t2}, 5, {t1}"); A(f"v_lshl_add_u32 {t1}, {t3}, 4, {t1}")
    A(f"s_lshl_b32 {sT2}, {sCB}, 8"); A(f"v_add_u32 {vWO}, {sT2}, {t1}")
    A(f"v_lshrrev_b32 {t1}, 1, v0"); A(f"v_mul_u32_u24 {t1}, 1152, {t1}"); A(f"v_lshl_add_u32 {t1}, {t3}, 4, {t1}")
    A(f"s_lshl_b32 {sT2}, {sCB}, 5"); A(f"s_add_u32 {sT2}, {sT2}, 1024"); A(f"v_add_u32 {vWOX}, {sT2}, {t1}")
    A(f"v_and_b32 {t1}, 15, v0"); A(f"v_lshlrev_b32 {t1}, 3, {t1}"); A(f"v_bfe_u32 {t2}, v0, 4, 1"); A(f"v_lshl_add_u32 {t1}, {t2}, 7, {t1}")
    A(f"v_lshl_add_u32 {vWR}, {t0}, 11, {t1}"); A(f"v_lshl_add_u32 {vWRX}, {t0}, 9, {t1}")
    A(f"v_add_u32 {vWR}, {sW4K}, {vWR}"); A(f"v_add_u32 {vWRX}, {sW4K}, {vWRX}")
    A(f"v_and_b32 {t1}, 15, v0"); A(f"v_lshl_add_u32 {t1}, {t2}, 5, {t1}"); A(f"v_lshlrev_b32 {t1}, 4, {t1}"); A(f"v_lshl_add_u32 {t1}, {t0}, 11, {t1}")
    A(f"s_lshl_b32 {sT2}, {sT0}, 8"); A(f"v_add_u32 {vOL}, {sT2}, {t1}")
    A(f"v_add_u32 {vYW}, {sW4K}, {vL16}")
    A(f"v_bfe_u32 {t1}, v0, 1, 3"); A(f"v_mul_u32_u24 {t1}, 1152, {t1}"); A(f"v_lshl_add_u32 {t1}, {t3}, 6, {t1}")
    A(f"v_lshrrev_b32 {t2}, 4, v0"); A(f"v_lshl_add_u32 {vYS}, {t2}, 4, {t1}")
    A(f"s_xor_b32 {sPART}, {sKEY}, 2"); A(f"s_mul_i32 {sPART}, {sPART}, {AREA}"); A(f"s_add_u32 {sPART}, {sPART}, {WS_AREA + A_ML}")
    A("s_waitcnt lgkmcnt(0)")
    A(f"s_add_u32 {sN}, {sN}, 1")
    A("s_mov_b32 s12, s44"); A("s_mov_b32 s13, s45"); A(f"s_mov_b32 s14, {WS_SIZE}"); A("s_mov_b32 s15, 0x20000")
    A(f"v_mov_b32 {vN}, {sN}")
    A(f"v_mov_b32 v{ML0}, {sXCC}"); A(f"v_mov_b32 v{ML0+1}, {sN}"); A(f"v_mov_b32 v{ML0+3}, {sN}")
    A(f"s_lshl_b32 {sT2}, {sKEY}, 3"); A(f"s_add_u32 {sT2}, {sT2}, {WS_TAB}")
    if 'notab' not in skip: g.vm(f"buffer_store_dwordx2 {vr(ML0,2)}, {vZ}, {sWS}, {sT2} offen sc1", "TABS")

    def check_loop(load_fn, bad_fn, name):
        lo = g.new(name+"_ok"); lr = g.new(name+"_re")
        bad_fn(); A("s_nop 1"); A(f"s_cbranch_vccz {lo}")
        A(f"s_mov_b32 {sCNT}, 0")
        g.lab(lr)
        load_fn(raw=True); A("s_waitcnt vmcnt(0)")
        A(f"s_add_u32 {sCNT}, {sCNT}, 1"); A(f"s_cmp_gt_u32 {sCNT}, {spin}"); A(f"s_cbranch_scc1 {lo}")
        bad_fn(); A("s_nop 1"); A(f"s_cbranch_vccnz {lr}")
        g.lab(lo)
    def ld(line, tag, raw):
        if raw: A(line)
        else: g.vm(line, tag)
    def bad_tags(regs, mask=None):
        def f():
            A(f"v_xor_b32 {t0}, {vN}, v{regs[0]}")
            if len(regs) > 1: A(f"v_xor_b32 {t1}, {vN}, v{regs[1]}")
            for i, r in enumerate(regs[2:]):
                tt = t0 if i % 2 == 0 else t1
                A(f"v_bitop3_b32 {tt}, {tt}, v{r}, {vN} bitop3:0xf6")
            if len(regs) > 1: A(f"v_or_b32 {t0}, {t0}, {t1}")
            if mask is not None: A(f"v_and_b32 {t0}, {mask}, {t0}")
            A(f"v_cmp_ne_u32 vcc, 0, {t0}")
        return f
    QL = FR + 16
    def load_q(raw=False):
        for i in range(4): ld(f"buffer_load_dwordx4 {vr(QL+4*i,4)}, {vL16}, {sWS}, {sQOFF} offen offset:{1024*i} sc1", "Q", raw)
    def load_tab(raw=False):
        A(f"s_lshl_b32 {sT0}, {sJ}, 8"); A(f"s_add_u32 {sT0}, {sT0}, {WS_TAB}"); A(f"v_lshrrev_b32 {t2}, 1, {vMLA}")
        ld(f"buffer_load_dwordx2 {vr(ML1,2)}, {t2}, {sWS}, {sT0} offen sc1", "TAB", raw)
    def load_ml(raw=False): ld(f"buffer_load_dwordx4 {vr(ML1,4)}, {vMLA}, {sWS}, {sPART} offen sc1", "ML", raw)
    def qk(hq):
        for s in range(8):
            cc = "0" if s == 0 else vr(SR+16*hq, 16)
            A(f"v_mfma_f32_32x32x16_bf16 {vr(SR+16*hq,16)}, {ar(32*hq+4*s,4)}, {vr(QR+4*s,4)}, {cc}")
    def mx(hq):
        for i in range(8): A(f"v_max3_f32 {vMX}, {vMX}, v{SR+16*hq+2*i}, v{SR+16*hq+2*i+1}")
    def expt(hq):
        b = SR+16*hq
        for r in range(16): A(f"v_fma_f32 v{b+r}, v{b+r}, {sC}, -{vMC}")
        for r in range(16): A(f"v_exp_f32 v{b+r}, v{b+r}")
        for i in range(8):
            A(f"v_add_f32 {vL0}, {vL0}, v{b+2*i}"); A(f"v_add_f32 {vL1}, {vL1}, v{b+2*i+1}")
            A(f"v_cvt_pk_bf16_f32 v{b+i}, v{b+2*i}, v{b+2*i+1}")
    def pwrite(tile):
        l = g.new("pw"); hq = tile >> 1
        A(f"s_cmp_{'ge' if (tile & 1) == 0 else 'lt'}_u32 {sW}, 2"); A(f"s_cbranch_scc1 {l}")
        for u in range(2): A(f"ds_write_b128 {vPW}, {vr(SR+16*hq+4*u,4)} offset:{(tile & 1)*4096 + 1024*u}")
        g.lab(l)
    def read_wo(tau):
        slot = slot_of(("WO", tau))
        if tau < 8:
            A(f"v_add_u32 {t0}, {slot*SLOT}, {vWR}")
            for nl in range(4):
                nu = 4*(tau & 1) + nl; d = (nu*4 + (tau >> 1))*4
                for a in range(2): A(f"ds_read_b64_tr_b16 {ar(d+2*a, 2)}, {t0} offset:{1024*a + 256*nl}")
        else:
            A(f"v_add_u32 {t0}, {slot*SLOT}, {vWRX}")
            for ks in range(4):
                d = (8*4 + ks)*4
                for a in range(2): A(f"ds_read_b64_tr_b16 {ar(d+2*a, 2)}, {t0} offset:{1024*ks + 256*a}")

    steps = [e for e in ring if e[0] in ("QP", "T")]
    i_qp8 = steps.index(("QP", 8))
    s_qx = i_qp8 + 1
    s_qld = s_qx + q_ld
    s_qck = s_qld + LA - 1
    s_qrd = s_qck + 1
    s_tab = s_qx + tab_ld; s_tabc = s_tab + LA - 1
    i_k15 = steps.index(("T", 15))
    assert s_qrd <= i_k15, (s_qrd, i_k15)
    qk_done = 0; mx_done = 0; parked = 0
    prev = None
    for si, e in enumerate(steps[:i_k15+1]):
        kind, n = e
        g.c(f"---- step {si}: {kind} {n}")
        g.wait_vm(e); A("s_barrier")
        stamp(f"{'QP' if kind == 'QP' else 'K'}{n}")
        if si == s_qx:
            A(f"s_xor_b32 {sT0}, {sW}, 2"); A(f"s_lshl_b32 {sT0}, {sT0}, 11"); A(f"s_add_u32 {sT0}, {sT0}, {PBUF}"); A(f"v_add_u32 {t0}, {sT0}, {vL16}")
            A(f"ds_read_b128 {vr(FR,4)}, {t0}"); A(f"ds_read_b128 {vr(FR+4,4)}, {t0} offset:1024")
            A("s_waitcnt lgkmcnt(0)")
            for i in range(8): A(f"v_add_f32 v{FR+i}, v{FR+i}, v{OACC+i}")
            for i in range(4): A(f"v_cvt_pk_bf16_f32 v{FR+8+2*i}, v{FR+2*i}, v{FR+2*i+1}"); A(f"v_mov_b32 v{FR+9+2*i}, {sN}")
            for u in range(0 if 'noqst' in skip else 2): g.vm(f"buffer_store_dwordx4 {vr(FR+8+4*u,4)}, {vQST}, {sWS}, 0 offen offset:{1024*u} {qstpol}", "QST")
            A(f"s_lshl_b32 {sT0}, {sJ}, 2"); A(f"s_add_u32 {sT0}, {sT0}, {sW}"); A(f"s_mul_i32 {sT0}, {sT0}, {128*1152}")
            A(f"s_add_u32 s16, s40, {sT0}"); A("s_addc_u32 s17, s41, 0"); A(f"s_mov_b32 s18, {128*1152}")
            A("s_mov_b32 s20, s42"); A("s_mov_b32 s21, s43"); A(f"s_mov_b32 s22, {128*1152}")
        if si == s_qld and 'noqld' not in skip: load_q()
        if si == s_tab and 'notab' not in skip: load_tab()
        issue_upto(rpos[e] + LA, rpos[prev] if prev else -1)
        sl = slot_of(e)*SLOT
        if kind == "QP":
            A(f"v_add_u32 {t0}, {sl}, {vQA}"); A(f"v_add_u32 {t1}, {sl}, {vQB}"); A(f"v_xor_b32 {t2}, 32, {t1}")
            for u in range(2):
                A(f"ds_read_b64_tr_b16 {vr(FR+8*u, 2)}, {t0} offset:{2048*u}")
                A(f"ds_read_b64_tr_b16 {vr(FR+8*u+2, 2)}, {t0} offset:{2048*u+512}")
                A(f"ds_read_b128 {vr(FR+8*u+4, 4)}, {t1 if u == 0 else t2}")
            for u in range(2):
                A(f"s_waitcnt lgkmcnt({3*(1-u)})")
                cc = "0" if (n == 0 and u == 0) else vr(OACC, 16)
                A(f"v_mfma_f32_32x32x16_bf16 {vr(OACC,16)}, {vr(FR+8*u,4)}, {vr(FR+8*u+4,4)}, {cc}")
            if n == 8:
                l1 = g.new("qx"); l2 = g.new("qx")
                A(f"s_lshl_b32 {sT0}, {sW}, 11"); A(f"s_add_u32 {sT0}, {sT0}, {PBUF}"); A(f"v_add_u32 {t0}, {sT0}, {vL16}")
                A("s_nop 7"); A(f"s_cmp_ge_u32 {sW}, 2"); A(f"s_cbranch_scc1 {l1}")
                A(f"ds_write_b128 {t0}, {vr(OACC+8,4)}"); A(f"ds_write_b128 {t0}, {vr(OACC+12,4)} offset:1024")
                A(f"s_branch {l2}")
                g.lab(l1)
                A(f"ds_write_b128 {t0}, {vr(OACC,4)}"); A(f"ds_write_b128 {t0}, {vr(OACC+4,4)} offset:1024")
                A("s_nop 1")
                for i in range(8): A(f"v_mov_b32 v{OACC+i}, v{OACC+8+i}")
                g.lab(l2)
        else:
            l = g.new("kr")
            A(f"s_cmp_{'ge' if (n & 1) == 0 else 'lt'}_u32 {sW}, 2"); A(f"s_cbranch_scc1 {l}")
            A(f"v_add_u32 {t0}, {sl}, {vKR}")
            for s in range(8):
                if s == 0: A(f"ds_read_b128 {ar(32*(n>>1), 4)}, {t0}")
                else:
                    tt = t1 if s & 1 else t2
                    A(f"v_xor_b32 {tt}, {32*s}, {t0}"); A(f"ds_read_b128 {ar(32*(n>>1)+4*s, 4)}, {tt}")
            g.lab(l)
        if si == s_tabc and 'notab' in skip: A(f"s_mov_b32 {sSAME}, 0")
        if si == s_tabc and 'notab' not in skip:
            g.wait_vm("TAB"); check_loop(load_tab, bad_tags([ML1+1]), "tab")
            A(f"v_cmp_ne_u32 vcc, {sXCC}, v{ML1}"); A("s_nop 1"); A(f"s_or_b32 {sSAME}, vcc_lo, vcc_hi")
            if forcesc1: A(f"s_mov_b32 {sSAME}, 1")
        if si == s_qck:
            if 'noqld' not in skip: g.wait_vm("Q"); check_loop(load_q, bad_tags([QL+1+2*i for i in range(8)]), "q")
            stamp("Qok")
            for k in range(2):
                b = QL + 8*k
                A(f"v_mov_b32 v{b+1}, v{b+2}"); A(f"v_mov_b32 v{b+2}, v{b+4}"); A(f"v_mov_b32 v{b+3}, v{b+6}")
            A(f"s_lshl_b32 {sT0}, {sW}, 11"); A(f"s_add_u32 {sT0}, {sT0}, {PBUF}"); A(f"v_add_u32 {t0}, {sT0}, {vL16}")
            A(f"ds_write_b128 {t0}, {vr(QL,4)}"); A(f"ds_write_b128 {t0}, {vr(QL+8,4)} offset:1024")
        if si == s_qrd:
            for s in range(8): A(f"ds_read_b128 {vr(QR+4*s,4)}, {vPR} offset:{1024*s}")
            A("s_waitcnt lgkmcnt(0)")
        if si >= s_qrd:
            k = 0
            while qk_done < parked and (k < qk_per_step or e == ("T", 15)):
                qk(qk_done); qk_done += 1; k += 1
                if mx_done < qk_done - 1: A("s_nop 3"); mx(mx_done); mx_done += 1
        A("s_waitcnt lgkmcnt(0)")
        if kind == "T": parked = (n + 1) >> 1
        prev = e
    while qk_done < 8: qk(qk_done); qk_done += 1
    A("s_nop 3")
    while mx_done < 7: mx(mx_done); mx_done += 1
    A("s_nop 11"); mx(7)
    A(f"v_mov_b32 {t1}, {vMX}"); A("s_nop 1"); A(f"v_permlane32_swap_b32 {vMX}, {t1}"); A(f"v_max_f32 {vMX}, {vMX}, {t1}")
    A(f"ds_write_b32 {vXW}, {vMX}"); A("s_waitcnt lgkmcnt(0)"); A("s_barrier")
    stamp("maxbar")
    issue_upto(rpos[("T", 15)] + LA + 1, rpos[("T", 15)])
    A(f"ds_read2_b32 v[18:19], {vXR} offset0:0 offset1:32"); A(f"ds_read2_b32 v[20:21], {vXR} offset0:64 offset1:96")
    A("s_waitcnt lgkmcnt(0)")
    A(f"v_max3_f32 {vMX}, v18, v19, v20"); A(f"v_max_f32 {vMX}, {vMX}, v21"); A(f"v_mul_f32 {vMC}, {sC}, {vMX}")
    expt(0); pwrite(0); A("s_waitcnt lgkmcnt(0)")
    exp_done = 1

    LV = la_v or LA
    st_lw = (7 + exp_per_step - 1)//exp_per_step - 1
    st_mlc = ml_ld + LV - 1
    assert st_lw + 1 < ml_ld and st_mlc <= 14
    for t in range(16):
        e = ("T", 16 + t)
        g.c(f"---- V step {t}")
        g.wait_vm(e); A("s_barrier")
        stamp(f"V{t}")
        if t == st_lw + 1:
            A(f"ds_read2_b32 v[18:19], {vXR} offset0:128 offset1:160"); A(f"ds_read2_b32 v[20:21], {vXR} offset0:192 offset1:224")
            A("s_waitcnt lgkmcnt(0)")
            A(f"v_add_f32 v18, v18, v19"); A(f"v_add_f32 v20, v20, v21"); A(f"v_add_f32 v{ML0+2}, v18, v20"); A(f"v_mov_b32 v{ML0}, {vMC}")
            A(f"s_add_u32 {sT0}, {sAREA}, {A_ML}")
            g.vm(f"buffer_store_dwordx4 {vr(ML0,4)}, {vMLA}, {sWS}, {sT0} offen sc1", "MLS")
        if t == ml_ld: load_ml()
        if t < 15: issue_upto(rpos[e] + LV, rpos[("T", 15 + t)])
        A(f"v_add_u32 {t0}, {slot_of(e)*SLOT}, {vVR}")
        for u in range(4):
            A(f"ds_read_b128 {vr(FR+8*u+4,4)}, {vPR} offset:{(t & 1)*4096 + 1024*u}")
            for a in range(2): A(f"ds_read_b64_tr_b16 {vr(FR+8*u+2*a,2)}, {t0} offset:{4096*u + 2048*a}")
        for u in range(4):
            A(f"s_waitcnt lgkmcnt({3*(3-u)})")
            cc = "0" if (t == 0 and u == 0) else vr(OACC, 16)
            A(f"v_mfma_f32_32x32x16_bf16 {vr(OACC,16)}, {vr(FR+8*u,4)}, {vr(FR+8*u+4,4)}, {cc}")
        for k, te in enumerate(early):
            if t == te: read_wo(k)
        k = 0
        while exp_done < 8 and k < exp_per_step: expt(exp_done); exp_done += 1; k += 1
        if t < 15: pwrite(t + 1)
        if t == st_lw:
            assert exp_done == 8
            A(f"v_add_f32 {vL0}, {vL0}, {vL1}"); A(f"v_mov_b32 {vL1}, {vL0}"); A("s_nop 1"); A(f"v_permlane32_swap_b32 {vL0}, {vL1}")
            A(f"v_add_f32 {vL0}, {vL0}, {vL1}"); A(f"ds_write_b32 {vXW}, {vL0} offset:512")
        if t == st_mlc:
            g.wait_vm("ML"); check_loop(load_ml, bad_tags([ML1+1, ML1+3]), "ml")
            A(f"v_max_f32 {t1}, v{ML0}, v{ML1}"); A(f"v_sub_f32 {t2}, v{ML0}, {t1}"); A(f"v_sub_f32 {t3}, v{ML1}, {t1}")
            A(f"v_exp_f32 {t2}, {t2}"); A(f"v_exp_f32 {t3}, {t3}"); A("s_nop 0")
            A(f"v_mul_f32 {t1}, {t2}, v{ML0+2}"); A(f"v_fma_f32 {t1}, {t3}, v{ML1+2}, {t1}"); A(f"v_rcp_f32 {t1}, {t1}"); A("s_nop 0")
            A(f"v_mul_f32 {vSC}, {t2}, {t1}")
        if t == 14:
            A(f"s_andn2_b32 {sT1}, {sKEY}, 3"); A(f"s_lshr_b32 {sT2}, {sW}, 1"); A(f"s_add_u32 {sT1}, {sT1}, {sT2}")
            A(f"s_mul_i32 {sT1}, {sT1}, {AREA}"); A(f"s_add_u32 {sQS1}, {sT1}, {WS_AREA}"); A(f"s_add_u32 {sQS2}, {sQS1}, {2*AREA}")
            A(f"s_add_u32 {sPART}, {sAREA}, {sW4K}")
            for i in range(8): A(f"v_mov_b32 v{SR+1+2*i}, {sN}")
        if t < 15: A("s_waitcnt lgkmcnt(0)")
    A("s_nop 11")
    for r in range(16): A(f"v_mul_f32 v{OACC+r}, v{OACC+r}, {vSC}")
    for i in range(8): A(f"v_cvt_pk_bf16_f32 v{SR+2*i}, v{OACC+2*i}, v{OACC+2*i+1}")
    l1 = g.new("os"); l2 = g.new("os")
    A(f"s_cmp_eq_u32 {sSAME}, 0"); A(f"s_cbranch_scc1 {l1}")
    for u in range(4): A(f"buffer_store_dwordx4 {vr(SR+4*u,4)}, {vL16}, {sWS}, {sPART} offen offset:{1024*u} sc1")
    A(f"s_branch {l2}")
    g.lab(l1)
    for u in range(4): g.vm(f"buffer_store_dwordx4 {vr(SR+4*u,4)}, {vL16}, {sWS}, {sPART} offen offset:{1024*u}", "OST")
    g.lab(l2)
    stamp("Opub")
    issue_upto(len(ring), rpos[("T", 30)])
    assert issued[0] == len(ring)
    OL = SR + 64
    def load_o(raw=False):
        for s in range(2):
            for ks in range(4):
                base = sQS1 if s == 0 else sQS2
                if ks: A(f"s_add_u32 {sT1}, {base}, {4096*ks}")
                for e2 in range(2):
                    ld(f"buffer_load_dwordx4 {vr(OL+32*s+8*ks+4*e2,4)}, {vOL}, {sWS}, {base if ks == 0 else sT1} offen offset:{1024*e2} sc1", "O", raw)
    load_o()
    for tau in range(len(early), 9):
        g.wait_vm(("WO", tau)); read_wo(tau)
    stamp("WOok")
    g.wait_vm("O"); check_loop(load_o, bad_tags([OL+1+2*i for i in range(32)]), "o")
    stamp("Ook")
    for k in range(8):
        b = OL + 8*k
        A(f"v_mov_b32 v{b+1}, v{b+2}"); A(f"v_mov_b32 v{b+2}, v{b+4}"); A(f"v_mov_b32 v{b+3}, v{b+6}")
    A("s_waitcnt lgkmcnt(0)")
    Y = SR + 16
    ysl = [slot_of(("WO", 6)), slot_of(("WO", 7)), slot_of(("WO", 8))]
    for nu in range(9):
        for s in range(2):
            for ks in range(4):
                cc = "0" if (s == 0 and ks == 0) else vr(Y+4*nu, 4)
                A(f"v_mfma_f32_16x16x32_bf16 {vr(Y+4*nu,4)}, {ar((nu*4+ks)*4,4)}, {vr(OL+32*s+8*ks,4)}, {cc}")
        if nu > 0:
            A(f"v_add_u32 {t0}, {ysl[(nu-1) >> 2]*SLOT}, {vYW}")
            A(f"ds_write_b128 {t0}, {vr(Y+4*(nu-1),4)} offset:{((nu-1) & 3)*1024}")
    A(f"v_add_u32 {t0}, {ysl[2]*SLOT}, {vYW}")
    A(f"s_lshr_b32 {sT0}, {sW}, 1"); A(f"s_cmp_eq_u32 {sT0}, 0"); csel(sT0, ysl[0]*SLOT, ysl[1]*SLOT)
    A(f"s_and_b32 {sT1}, {sW}, 1"); A(f"s_lshl_b32 {sT1}, {sT1}, 11"); A(f"s_add_u32 {sT0}, {sT0}, {sT1}")
    A(f"ds_write_b128 {t0}, {vr(Y+32,4)}")
    A(f"v_add_u32 {vYR}, {sT0}, {vL16}")
    A(f"s_lshl_b32 {sT2}, {sW}, 8"); A(f"s_add_u32 {sT2}, {sT2}, {sAREA}"); A(f"s_add_u32 {sT2}, {sT2}, {A_Y}")
    A(f"s_mov_b32 {sT3}, 0xff")
    A("s_waitcnt lgkmcnt(0)"); A("s_barrier")
    R = QR - 16
    for k in range(2):
        for w in range(4): A(f"ds_read_b128 {vr(R+16*k+4*w,4)}, {vYR} offset:{4096*w + 1024*k}")
    def sum4(base):
        for i in range(4): A(f"v_add_f32 v{base+i}, v{base+i}, v{base+4+i}")
        for i in range(4): A(f"v_add_f32 v{base+8+i}, v{base+8+i}, v{base+12+i}")
        for i in range(4): A(f"v_add_f32 v{base+i}, v{base+i}, v{base+8+i}")
        for i in range(4): A(f"v_bfi_b32 v{base+i}, {sT3}, {vN}, v{base+i}")
    for k in range(2):
        A(f"s_waitcnt lgkmcnt({4*(1-k)})"); sum4(R+16*k)
        A(f"buffer_store_dwordx4 {vr(R+16*k,4)}, {vYS}, {sWS}, {sT2} offen offset:{128*k} sc1")
    stamp("Ypub")
    A(f"s_cmp_ge_u32 {sW}, 2"); A("s_cbranch_scc1 L_fin")
    l = g.new("t8")
    A(f"s_cmp_eq_u32 {sW}, 0"); A(f"s_cbranch_scc1 {l}")
    A(f"v_add_u32 {t0}, {ysl[2]*SLOT}, {vL16}")
    for w in range(4): A(f"ds_read_b128 {vr(R+32+4*w,4)}, {t0} offset:{4096*w}")
    A(f"s_add_u32 {sT2}, {sAREA}, {A_Y + 1024}")
    A("s_waitcnt lgkmcnt(0)"); sum4(R+32)
    A(f"buffer_store_dwordx4 {vr(R+32,4)}, {vYS}, {sWS}, {sT2} offen sc1")
    g.lab(l)
    A(f"v_and_b32 {t0}, 7, v0"); A(f"v_add_u32 {t0}, 64, {t0}"); A(f"s_cmp_eq_u32 {sW}, 0"); A("s_cselect_b64 vcc, -1, 0"); A("s_nop 0")
    A(f"v_cndmask_b32 {vT2}, {t0}, v0, vcc")
    A(f"v_lshlrev_b32 {t3}, 4, {vT2}")
    A(f"s_mul_i32 {sT0}, {sR}, {AREA}"); A(f"s_mul_i32 {sT1}, {sJ}, 1152"); A(f"s_add_u32 {sT0}, {sT0}, {sT1}"); A(f"s_add_u32 {sQS1}, {sT0}, {WS_AREA + A_Y}")
    H = SR
    def load_y(raw=True):
        A(f"s_mov_b32 {sT0}, {sQS1}")
        for j in range(8):
            A(f"buffer_load_dwordx4 {vr(H+4*j,4)}, {t3}, {sWS}, {sT0} offen sc1")
            if j < 7: A(f"s_add_u32 {sT0}, {sT0}, {32*AREA}")
    load_y()
    A(f"s_lshl_b32 {sT2}, {sBb}, 4"); A(f"s_lshl_b32 {sT3}, {sJ}, 1"); A(f"s_add_u32 {sT2}, {sT2}, {sT3}"); A(f"s_mul_i32 {sT2}, {sT2}, 1152")
    A(f"s_lshl_b32 {sT3}, {sCB}, 8"); A(f"s_lshl_b32 {sOFF}, {sCB}, 5"); A(f"s_add_u32 {sOFF}, {sOFF}, {1024 - 256}")
    A(f"s_cmp_eq_u32 {sW}, 0"); A(f"s_cselect_b32 {sT3}, {sT3}, {sOFF}"); A(f"s_add_u32 {sT2}, {sT2}, {sT3}")
    A(f"v_bfe_u32 {t2}, {vT2}, 2, 1"); A(f"v_mul_u32_u24 {t2}, 1152, {t2}")
    A(f"v_lshrrev_b32 v21, 3, {vT2}"); A(f"v_lshl_add_u32 {t2}, v21, 5, {t2}"); A(f"v_and_b32 v21, 3, {vT2}"); A(f"v_lshl_add_u32 {t2}, v21, 3, {t2}")
    A("s_waitcnt vmcnt(0)")
    A(f"v_and_b32 {vN}, 0xff, {vN}")
    def bad_y():
        for i in range(32): A(f"v_xor_b32 v{H+i}, {vN}, v{H+i}")
        A(f"v_or3_b32 {t0}, v{H}, v{H+1}, v{H+2}"); A(f"v_or3_b32 {t1}, v{H+3}, v{H+4}, v{H+5}")
        for i in range(6, 32, 2):
            tt = t0 if (i // 2) % 2 else t1
            A(f"v_or3_b32 {tt}, {tt}, v{H+i}, v{H+i+1}")
        A(f"v_or_b32 {t0}, {t0}, {t1}"); A(f"v_and_b32 {t0}, 0xff, {t0}"); A(f"v_cmp_ne_u32 vcc, 0, {t0}")
    check_loop(load_y, bad_y, "y")
    for st in (4, 8, 16):
        for base in range(H, H+32, 2*st):
            for i in range(4): A(f"v_add_f32 v{base+i}, v{base+i}, v{base+st+i}")
    A(f"v_cvt_pk_bf16_f32 v{H}, v{H}, v{H+1}"); A(f"v_cvt_pk_bf16_f32 v{H+1}, v{H+2}, v{H+3}")
    A(f"buffer_store_dwordx2 {vr(H,2)}, {t2}, {sB}, {sT2} offen {outpol}")
    A(f"s_or_b32 {sT0}, s2, {sW}"); A(f"s_cmp_lg_u32 {sT0}, 0"); A("s_cbranch_scc1 L_fin")
    A(f"s_mov_b32 {sT0}, {WS_CTRL}")
    A(f"v_mov_b32 {vN}, {sN}")
    A(f"buffer_store_dword {vN}, {vZ}, {sWS}, {sT0} offen sc1")
    g.lab("L_fin")
    if prof:
        A("s_waitcnt vmcnt(0)")
        stamp("end")
        ns = nstamp[0]
        A(f"s_lshl_b32 {sT0}, s2, 2"); A(f"s_add_u32 {sT0}, {sT0}, {sW}"); A(f"s_mul_i32 {sT0}, {sT0}, {8*ns}"); A(f"s_add_u32 {sT0}, {sT0}, {STAMP_OFF}")
        A(f"s_add_u32 s46, s46, {sT0}"); A("s_addc_u32 s47, s47, 0")
        A("v_mov_b32 v1, 0"); A("s_mov_b64 exec, 1")
        for j in range(ns):
            A(f"v_mov_b32 v2, s{ST0+2*j}"); A(f"v_mov_b32 v3, s{ST0+2*j+1}")
            A(f"global_store_dwordx2 v1, v[2:3], s[46:47] offset:{8*j}"); A("s_waitcnt vmcnt(0)")
        sys.stderr.write(f"nstamps={ns} start " + " ".join(names) + "\n")
    g.lab("L_end"); g.L.append("s_endpgm")
    g.L += ['.section .rodata,"a"', ".p2align 6", f".amdhsa_kernel {KN}",
            "  .amdhsa_next_free_vgpr 512", "  .amdhsa_next_free_sgpr 102", "  .amdhsa_accum_offset 256",
            "  .amdhsa_group_segment_fixed_size 0", "  .amdhsa_kernarg_size 64", "  .amdhsa_user_sgpr_count 2",
            "  .amdhsa_user_sgpr_kernarg_segment_ptr 1", "  .amdhsa_system_sgpr_workgroup_id_x 1",
            "  .amdhsa_float_denorm_mode_32 3", "  .amdhsa_float_denorm_mode_16_64 3", ".end_amdhsa_kernel"]
    return "\n".join(g.L) + "\n"

if __name__ == "__main__":
    import argparse, ast
    ap = argparse.ArgumentParser(); ap.add_argument("out"); ap.add_argument("kw", nargs="*")
    a = ap.parse_args()
    kw = {}
    for e in a.kw:
        k, v = e.split("=", 1)
        try: kw[k] = ast.literal_eval(v)
        except Exception: kw[k] = v
    if "stamps" in kw: kw["stamps"] = kw["stamps"].split(","); kw["prof"] = True
    open(a.out, "w").write(gen(**kw))
```
